```python
import torch

def _softmax(x, axis=-1):
    return torch.softmax(x, dim=axis)
def _gelu(x):
    return torch.nn.functional.gelu(x, approximate="tanh")
def _silu(x):
    return torch.nn.functional.silu(x)
def _sigmoid(x):
    return torch.sigmoid(x)
def _layernorm(x, axis=-1, eps=1e-5):
    m = x.mean(dim=axis, keepdim=True)
    v = x.var(dim=axis, keepdim=True, unbiased=False)
    return (x - m) / torch.sqrt(v + eps)
def _scatter_add(tgt, idx, src, axis=0):
    return tgt.clone().index_add_(axis, idx, src)
def _segment_sum(src, seg, n):
    out = torch.zeros((n,) + src.shape[1:], dtype=src.dtype)
    return out.index_add_(0, seg, src)
def _pad(x, pw):
    flat = tuple(v for pair in reversed(pw) for v in pair)
    return torch.nn.functional.pad(x, flat)

kernel_name = 'parallel_sum__compressed_kv_cla__geglu_ffn__prompt'

def setup_inputs():

    _w = (lambda a: (lambda t: t.to(torch.bfloat16) if t.is_floating_point() else t)(torch.as_tensor(a)))
    def _A_setup():
        B, H, Sq, Sk, D, M = 1, 32, 2048, 2048, 128, 576
        Dc = 4 * D
        return {
            "x": _w((lambda *s: torch.randn(*s, dtype=torch.bfloat16) * 0.05)(B, Sq, M)),
            "c_kv": _w((lambda *s: torch.randn(*s, dtype=torch.bfloat16) * 1.6)(B, Sk, Dc)),
            "w_q": _w((lambda *s: torch.randn(*s, dtype=torch.bfloat16) * 0.8)(M, H, D) * (M ** -0.5)),
            "w_uk": _w((lambda *s: torch.randn(*s, dtype=torch.bfloat16) * 0.8)(Dc, H, D) * (Dc ** -0.5)),
            "w_uv": _w((lambda *s: torch.randn(*s, dtype=torch.bfloat16) * 1.6)(Dc, H, D) * (Dc ** -0.5)),
            "w_o": _w((lambda *s: torch.randn(*s, dtype=torch.bfloat16) * 1.6)(H, D, M) * ((H * D) ** -0.5)),
        }
    _A_in = _A_setup()

    def _B_setup():
        B, S, D, F = 1, 2048, 576, 4608
        return {
            "x": _w((lambda *s: torch.randn(*s, dtype=torch.bfloat16) * 0.05)(B, S, D)),
            "w_gate": _w((lambda *s: torch.randn(*s, dtype=torch.bfloat16) * 0.05)(D, F)),
            "w_up": _w((lambda *s: torch.randn(*s, dtype=torch.bfloat16) * 0.05)(D, F)),
            "w_down": _w((lambda *s: torch.randn(*s, dtype=torch.bfloat16) * 0.05)(F, D)),
        }
    _B_in = _B_setup()

    return {
        "A_x": _A_in["x"],
        "A_c_kv": _A_in["c_kv"],
        "A_w_q": _A_in["w_q"],
        "A_w_uk": _A_in["w_uk"],
        "A_w_uv": _A_in["w_uv"],
        "A_w_o": _A_in["w_o"],
        "B_x": _B_in["x"],
        "B_w_gate": _B_in["w_gate"],
        "B_w_up": _B_in["w_up"],
        "B_w_down": _B_in["w_down"],
    }

def reference(A_x, A_c_kv, A_w_q, A_w_uk, A_w_uv, A_w_o, B_x, B_w_gate, B_w_up, B_w_down):
    def _A_ref(x, c_kv, w_q, w_uk, w_uv, w_o):
        B, Sq, M = x.shape[0], x.shape[1], x.shape[2]
        Sk = c_kv.shape[1]
        H, D = w_q.shape[1], w_q.shape[2]
        q = torch.einsum("bqm,mhd->bhqd", x, w_q)
        k = torch.einsum("bkc,chd->bhkd", c_kv, w_uk)
        v = torch.einsum("bkc,chd->bhkd", c_kv, w_uv)
        scores = torch.einsum("bhqd,bhkd->bhqk", q, k) * (D ** -0.5)
        off = Sk - Sq
        qi = torch.arange(Sq)[:, None]
        kj = torch.arange(Sk)[None, :]
        cmask = kj <= (qi + off)
        scores = torch.where(cmask[None, None], scores, -1e9)
        p = _softmax(scores, axis=-1)
        ctx = torch.einsum("bhqk,bhkd->bhqd", p, v)
        return torch.einsum("bhqd,hdm->bqm", ctx, w_o)

    def _B_ref(x, w_gate, w_up, w_down):
        return (_gelu(x @ w_gate) * (x @ w_up)) @ w_down

    x = A_x
    xn = _layernorm(x, axis=-1)
    return x + _A_ref(xn, A_c_kv, A_w_q, A_w_uk, A_w_uv, A_w_o) + _B_ref(xn, B_w_gate, B_w_up, B_w_down)
```

```python
def R(kind, base, n=1):
    return [(kind, base + i) for i in range(n)]

class Reg:
    __slots__ = ("k", "b", "n")
    def __init__(self, k, b, n=1):
        self.k, self.b, self.n = k, b, n
    def __str__(self):
        if self.n == 1:
            return "%s%d" % (self.k, self.b)
        return "%s[%d:%d]" % (self.k, self.b, self.b + self.n - 1)
    def regs(self):
        return [(self.k, self.b + i) for i in range(self.n)]
    def sub(self, off, n=1):
        assert off + n <= self.n
        return Reg(self.k, self.b + off, n)
    def __getitem__(self, i):
        return self.sub(i, 1)

def V(b, n=1): return Reg("v", b, n)
def A(b, n=1): return Reg("a", b, n)
def S(b, n=1): return Reg("s", b, n)

def _regs(x):
    if isinstance(x, Reg):
        return x.regs()
    if isinstance(x, str) and x in ("vcc", "m0", "exec", "scc"):
        return [(x, 0)]
    return []

class Inst:
    __slots__ = ("text", "kind", "r", "w", "tag", "c", "cnt")
    def __init__(self, text, kind, r=(), w=(), tag=None, c=()):
        self.text, self.kind = text, kind
        self.r, self.w = set(r), set(w)
        self.tag = tag
        self.c = set(c)
        self.cnt = None
    def __repr__(self):
        return self.text

TRANS = ("v_exp_f32", "v_rcp_f32", "v_rsq_f32", "v_log_f32", "v_sqrt_f32")

def fmt(x):
    if isinstance(x, float):
        import struct
        if x in (0.5, 1.0, 2.0, 4.0, -0.5, -1.0, -2.0, -4.0):
            return repr(x)
        return "0x%08x" % struct.unpack("<I", struct.pack("<f", x))[0]
    if isinstance(x, int):
        if -16 <= x <= 64:
            return str(x)
        return "0x%x" % (x & 0xffffffff)
    return str(x)

def mfma(d, a, b, c):
    cr = _regs(c)
    return Inst("mf %s, %s, %s, %s" % (d, a, b, fmt(c)), "mfma", _regs(a) + _regs(b) + cr, _regs(d), c=cr)

def valu(op, dst, *src, extra_r=(), extra_w=(), suffix=""):
    r = list(extra_r); w = list(extra_w)
    for d in (dst if isinstance(dst, (list, tuple)) else [dst]):
        w += _regs(d)
    for s in src:
        if isinstance(s, str) and s.startswith("-") and False:
            pass
        r += _regs(s)
    if op in ("v_fmac_f32",) or op.startswith("v_permlane"):
        r += _regs(dst)
    if op.startswith("v_permlane"):
        w += _regs(src[0])
    dtxt = ", ".join(str(d) for d in dst) if isinstance(dst, (list, tuple)) else str(dst)
    text = "%s %s, %s%s" % (op, dtxt, ", ".join(fmt(s) for s in src), suffix)
    kind = "trans" if op in TRANS else "valu"
    return Inst(text, kind, r, w)

class Neg:
    def __init__(self, x): self.x = x
    def __str__(self): return "-%s" % self.x
_old_regs = _regs
def _regs(x):
    if isinstance(x, Neg):
        return _old_regs(x.x)
    return _old_regs(x)

def salu(op, dst, *src, scc_r=False):
    r = []; w = []
    if dst is not None:
        w += _regs(dst)
    for s in src:
        r += _regs(s)
    if op.startswith("s_cmp") or op in ("s_add_u32", "s_sub_u32", "s_addc_u32", "s_subb_u32", "s_and_b32", "s_or_b32",
                                       "s_xor_b32", "s_lshl_b32", "s_lshr_b32", "s_add_i32", "s_sub_i32", "s_min_u32", "s_max_u32",
                                       "s_and_b64", "s_or_b64", "s_ashr_i32", "s_min_i32", "s_max_i32"):
        w.append(("scc", 0))
    if op in ("s_addc_u32", "s_subb_u32", "s_cselect_b32", "s_cselect_b64"):
        r.append(("scc", 0))
    parts = ([str(dst)] if dst is not None else []) + [fmt(s) for s in src]
    return Inst("%s %s" % (op, ", ".join(parts)), "salu", r, w)

def ds_read(dst, addr, off=0, tr=False):
    op = "ds_read_b64_tr_b16" if tr else {1: "ds_read_b32", 2: "ds_read_b64", 4: "ds_read_b128"}[dst.n]
    assert 0 <= off < 65536, off
    return Inst("%s %s, %s%s" % (op, dst, addr, " offset:%d" % off if off else ""), "ds_r", _regs(addr), _regs(dst))

def ds_write(addr, src, off=0):
    op = {1: "ds_write_b32", 2: "ds_write_b64", 4: "ds_write_b128"}[src.n]
    assert 0 <= off < 65536, off
    return Inst("%s %s, %s%s" % (op, addr, src, " offset:%d" % off if off else ""), "ds_w", _regs(addr) + _regs(src), [])

def _w(n): return {1: "dword", 2: "dwordx2", 4: "dwordx4"}[n]
def _so(soff): return fmt(soff)

def dma(voff, srd, soff, imm=0, tag=None, flags=""):
    assert 0 <= imm < 4096
    return Inst("buffer_load_dwordx4 %s, %s, %s offen%s lds%s" % (voff, srd, _so(soff), " offset:%d" % imm if imm else "", flags),
                "dma", _regs(voff) + _regs(srd) + _regs(soff) + [("m0", 0)], [], tag=tag)

def bload(dst, voff, srd, soff, imm=0, tag=None, flags=""):
    assert 0 <= imm < 4096
    return Inst("buffer_load_%s %s, %s, %s, %s offen%s%s" % (_w(dst.n), dst, voff, srd, _so(soff), " offset:%d" % imm if imm else "", flags),
                "vm_ld", _regs(voff) + _regs(srd) + _regs(soff), _regs(dst), tag=tag)

def bstore(src, voff, srd, soff, imm=0, tag=None, flags=""):
    assert 0 <= imm < 4096
    return Inst("buffer_store_%s %s, %s, %s, %s offen%s%s" % (_w(src.n), src, voff, srd, _so(soff), " offset:%d" % imm if imm else "", flags),
                "vm_st", _regs(voff) + _regs(srd) + _regs(soff) + _regs(src), [], tag=tag)

def barrier(): return Inst("s_barrier", "barrier")
def nop(n=0): return Inst("s_nop %d" % n, "nop")
def label(name): return Inst("%s:" % name, "label")
def branch(op, target):
    r = []
    if "scc" in op: r = [("scc", 0)]
    if "vcc" in op: r = [("vcc", 0)]
    if "exec" in op: r = [("exec", 0)]
    return Inst("%s %s" % (op, target), "branch", r)
def raw(text, kind="salu", r=(), w=()):
    rr = []; ww = []
    for x in r: rr += _regs(x)
    for x in w: ww += _regs(x)
    return Inst(text, kind, rr, ww)
def waitcnt(vm=None, lgkm=None):
    p = []
    if vm is not None: p.append("vmcnt(%d)" % vm)
    if lgkm is not None: p.append("lgkmcnt(%d)" % lgkm)
    i = Inst("s_waitcnt " + " ".join(p), "wait")
    i.cnt = (vm, lgkm)
    return i
def wait_tag(tag):
    return Inst("; wait_tag %s" % (tag,), "wait_tag", tag=tag)
def wait_ds():
    return Inst("; wait_ds", "wait_ds")
def smem_load(dst, base, off):
    return Inst("s_load_%s %s, %s, 0x%x" % ({1: "dword", 2: "dwordx2", 4: "dwordx4", 8: "dwordx8", 16: "dwordx16"}[dst.n], dst, base, off),
                "smem", _regs(base), _regs(dst))

VM = ("dma", "vm_ld", "vm_st")
DS = ("ds_r", "ds_w")

def insert_waits(ins, lg=None, vm=None):
    out = []
    lg = list(lg or []); vm = list(vm or [])
    def need(queue, idx):
        return len(queue) - 1 - idx
    def do_wait(vmc, lgc, hoist=False):
        nonlocal lg, vm
        if vmc is not None and vmc >= len(vm): vmc = None
        if lgc is not None and lgc >= len(lg): lgc = None
        if vmc is None and lgc is None: return
        if vmc is not None:
            vmc = min(vmc, 63); vm = vm[len(vm) - vmc:] if vmc else []
        if lgc is not None:
            lgc = min(lgc, 15); lg = lg[len(lg) - lgc:] if lgc else []
        if hoist:
            pos = len(out) - 1
            nl = nv = 0
            while pos >= 0 and out[pos].kind in ("ds_r", "ds_w", "dma", "vm_ld", "vm_st", "valu", "trans", "salu") and len(out) - pos <= 6:
                if out[pos].kind in DS: nl += 1
                if out[pos].kind in VM: nv += 1
                pos -= 1
            if pos >= 0 and out[pos].kind == "mfma" and (lgc is None or lgc >= nl) and (vmc is None or vmc >= nv):
                out.insert(pos + 1, waitcnt(None if vmc is None else vmc - nv, None if lgc is None else lgc - nl))
                return
        out.append(waitcnt(vmc, lgc))
    for i in ins:
        if i.kind == "wait_tag":
            idx = max([j for j, o in enumerate(vm) if o.tag == i.tag], default=None)
            if idx is not None: do_wait(need(vm, idx), None)
            continue
        if i.kind == "wait_ds":
            do_wait(None, 0)
            continue
        if i.kind == "wait":
            v, l = i.cnt
            if v is not None and v < len(vm): vm = vm[len(vm) - v:] if v else []
            if l is not None and l < len(lg): lg = lg[len(lg) - l:] if l else []
            out.append(i); continue
        if i.kind == "smem":
            out.append(i); continue
        touch = i.r | i.w
        vmc = lgc = None
        if touch:
            for j in range(len(vm) - 1, -1, -1):
                if vm[j].w & touch:
                    vmc = need(vm, j); break
            for j in range(len(lg) - 1, -1, -1):
                if lg[j].w & touch:
                    lgc = need(lg, j); break
        do_wait(vmc, lgc, hoist=(i.kind == "mfma"))
        if i.kind in VM:
            if len(vm) >= 63: do_wait(62, None)
            vm.append(i)
        if i.kind in DS:
            if len(lg) >= 15: do_wait(None, 14)
            lg.append(i)
        out.append(i)
    return out, lg, vm

def _isv(reg): return reg[0] in ("v", "a")

def hazard_need(p, c):
    n = 0
    pv = p.kind in ("valu", "trans"); cv = c.kind in ("valu", "trans")
    if pv:
        wv = {x for x in p.w if _isv(x)}
        ws = {x for x in p.w if not _isv(x)}
        if c.kind == "mfma" and wv & c.r: n = max(n, 2)
        if p.kind == "trans" and c.kind == "valu" and wv & (c.r | c.w): n = max(n, 1)
        if cv and wv & c.r:
            if c.text.startswith(("v_readfirstlane", "v_readlane")): n = max(n, 1)
            if c.text.startswith("v_permlane") or "row_" in c.text or "quad_perm" in c.text: n = max(n, 2)
        if ws:
            if cv and ws & c.r: n = max(n, 2)
            if c.kind in VM and ws & c.r: n = max(n, 5)
            if ("exec", 0) in ws and c.kind == "mfma": n = max(n, 4)
            if c.kind == "salu" and ws & c.r: n = max(n, 4)
            if c.kind == "branch" and ws & c.r: n = max(n, 5)
    if p.kind == "mfma":
        if (cv or c.kind in VM or c.kind in DS) and p.w & (c.r | c.w): n = max(n, 8)
        if c.kind == "mfma":
            if p.w & (c.r - c.c): n = max(n, 8)
            if p.w & c.c and p.w != c.c: n = max(n, 6)
            if p.w & c.w and p.w != c.c: n = max(n, 8)
        if cv and p.c & c.w: n = max(n, 3)
    if p.kind == "salu" and ("m0", 0) in p.w and c.kind == "dma": n = max(n, 1)
    if p.kind == "vm_st" and cv:
        data = {x for x in p.r if _isv(x)}
        if len(data) >= 4 and data & c.w: n = max(n, 2)
    if p.kind == "vm_st" and c.kind in ("vm_ld", "ds_r"):
        data = {x for x in p.r if _isv(x)}
        if len(data) >= 4 and data & c.w: n = max(n, 1)
    return n

def states(i):
    if i.kind == "nop":
        return int(i.text.split()[1]) + 1
    if i.kind in ("label",) or i.text.startswith(";"):
        return 0
    return 1

def insert_nops(ins, hist=None):
    out = list(hist or [])
    base = len(out)
    for c in ins:
        need = 0; dist = 0
        for p in reversed(out[-24:]):
            h = hazard_need(p, c)
            if h > dist: need = max(need, h - dist)
            dist += states(p)
            if dist >= 12: break
        while need > 0:
            k = min(need, 8)
            out.append(nop(k - 1)); need -= k
        out.append(c)
    return out[base:]

def finalize(ins, lg=None, vm=None, hist=None):
    a, lg, vm = insert_waits(ins, lg, vm)
    return insert_nops(a, hist), lg, vm

def text(ins):
    o = []
    for i in ins:
        if i.kind == "label": o.append(i.text)
        else: o.append(" " + i.text)
    return "\n".join(o) + "\n"

def interleave(main, fill):
    out = []
    def emit(lst):
        out.extend(lst)
    emit(fill.get(-1, []))
    for g, m in enumerate(main):
        out.append(m)
        emit(fill.get(g, []))
    for g in sorted(k for k in fill if k >= len(main)):
        emit(fill[g])
    return out

PRELUDE = """.amdgcn_target "amdgcn-amd-amdhsa--gfx950"
.text
.macro mf d, a, b, c
v_mfma_f32_16x16x32_bf16 \\d, \\a, \\b, \\c
.endm
"""

def kernel_text(name, ins):
    return ".globl %s\n.p2align 8\n.type %s,@function\n%s:\n%s" % (name, name, name, text(ins))

def descriptor(name, nvgpr=512, accum=256, nsgpr=96):
    return (".p2align 6\n.amdhsa_kernel %s\n .amdhsa_next_free_vgpr %d\n .amdhsa_next_free_sgpr %d\n .amdhsa_accum_offset %d\n"
            " .amdhsa_group_segment_fixed_size 0\n .amdhsa_kernarg_size 104\n .amdhsa_user_sgpr_count 2\n"
            " .amdhsa_user_sgpr_kernarg_segment_ptr 1\n .amdhsa_system_sgpr_workgroup_id_x 1\n"
            " .amdhsa_float_denorm_mode_32 3\n.end_amdhsa_kernel\n" % (name, nvgpr, nsgpr, accum))


class Gaps:
    def __init__(self, n, cap=2):
        self.n = n; self.cap = cap
        self.vec = {}; self.sal = {}; self.items = {}
    def _add(self, g, inst, scalar):
        lst = self.items.setdefault(g, [])
        if scalar:
            k = 0
            while k < len(lst) and lst[k].kind == "salu": k += 1
            lst.insert(k, inst)
        else:
            lst.append(inst)
    def block(self, g, insts):
        assert self.vec.get(g, 0) == 0, ("gap busy", g)
        self.vec[g] = self.cap; self.sal[g] = 9
        self.items.setdefault(g, []).extend(insts)
    def put(self, inst, earliest, latest=None):
        cost = 2 if inst.kind == "trans" else 1
        g = earliest
        if inst.kind == "salu":
            while g < self.n and (self.sal.get(g, 0) >= 1 or any(x.kind != "salu" and (x.r & inst.w) for x in self.items.get(g, []))): g += 1
            if g < self.n: self.sal[g] = self.sal.get(g, 0) + 1
            self._add(g, inst, True)
        else:
            while g < self.n and self.vec.get(g, 0) + cost > self.cap: g += 1
            if g < self.n: self.vec[g] = self.vec.get(g, 0) + cost
            self._add(g, inst, False)
        assert latest is None or g <= latest, ("late", inst.text, g, latest)
        return g
    def put_force(self, inst, earliest, latest):
        cost = 2 if inst.kind == "trans" else 1
        g = earliest
        while g < latest and self.vec.get(g, 0) + cost > self.cap: g += 1
        g = min(max(g, earliest), max(latest, earliest))
        self.vec[g] = self.vec.get(g, 0) + cost
        self._add(g, inst, False)
        return g
```

```python
from asmgen import *

P_X, P_CKV, P_WQ, P_WUK, P_WUV, P_WO, P_BX, P_WG = [S(4 + 2 * i, 2) for i in range(8)]
P_WU, P_WD, P_OUT, P_DBG = [S(20 + 2 * i, 2) for i in range(4)]
P_WS = S(28, 2)
S_ID = S(2)
S_W = S(3)

M, DM, H, HD, DC, F = 2048, 576, 32, 128, 512, 4608
WS_XN = 0
SZ_XN = 128 * 18 * 1024
WS_KV = 4 << 20
SZ_KV = 32 << 20
WS_HC = 40 << 20
SZ_HC = 128 * 272 * 1024
WS_PART = 80 << 20
SZ_PART = 8 * 64 * 36 * 1024

def load_ptrs(nwg, done):
    return [smem_load(S(4, 16), S(0, 2), 0), smem_load(S(20, 8), S(0, 2), 64), smem_load(P_WS, S(0, 2), 96),
            salu("s_cmp_ge_u32", None, S_ID, nwg), branch("s_cbranch_scc1", done),
            valu("v_lshrrev_b32", V(1), 6, V(0)), valu("v_readfirstlane_b32", S_W, V(1)),
            waitcnt(lgkm=0)]

def srd(dst, ptr, off, size):
    out = []
    if isinstance(off, int) and off == 0:
        out += [salu("s_mov_b32", dst[0], ptr[0]), salu("s_mov_b32", dst[1], ptr[1])]
    else:
        out += [salu("s_add_u32", dst[0], ptr[0], off), salu("s_addc_u32", dst[1], ptr[1], 0)]
    out += [salu("s_mov_b32", dst[2], size), salu("s_mov_b32", dst[3], 0x20000)]
    return out

STAMP_BASE = 70
def stamp(i):
    return [raw("s_memtime s[%d:%d]" % (STAMP_BASE + 2 * i, STAMP_BASE + 2 * i + 1), "other"), waitcnt(lgkm=0)]
def stamp_rt(i):
    return [raw("s_memrealtime s[%d:%d]" % (STAMP_BASE + 2 * i, STAMP_BASE + 2 * i + 1), "other"), waitcnt(lgkm=0)]
def stamp_out(n, srd_regs=S(64, 4), tmp=S(68)):
    o = srd(srd_regs, P_DBG, 0, 1 << 20)
    o += [waitcnt(vm=0), salu("s_lshl_b32", tmp, S_ID, 2), salu("s_add_u32", tmp, tmp, S_W), salu("s_lshl_b32", tmp, tmp, 6)]
    for i in range(n):
        o += [valu("v_mov_b32", V(1), S(STAMP_BASE + 2 * i)), valu("v_mov_b32", V(2), 4 * i), valu("v_add_u32", V(2), tmp, V(2)),
              bstore(V(1), V(2), srd_regs, 0), waitcnt(vm=0)]
    return o
DIAG = False

def stamp_nw(i):
    return [raw("s_memtime s[%d:%d]" % (STAMP_BASE + 2 * i, STAMP_BASE + 2 * i + 1), "other")]
```

```python
from asmgen import *

class Cfg:
    pass

def gemm_main(c, extra=None):
    NA, NB, T, NS = c.NA, c.NB, c.T, c.NS
    RING = len(c.ring)
    delay = getattr(c, "delay", 6)
    per_kk = NA * NB
    main = []
    for t in range(T):
        for kk in range(2):
            for a in range(NA):
                i = (t * 2 + kk) * NA + a
                af = c.ring[i % RING]
                for b in range(NB):
                    bf = c.breg((t * 2 + kk) & 1, b) if c.bmode == "lds" else c.breg(t, kk, b)
                    acc = c.acc(a, b)
                    cin = 0 if (t == 0 and kk == 0) else acc
                    main.append(mfma(acc, bf, af, cin) if c.swap else mfma(acc, af, bf, cin))
    n = len(main)
    G = Gaps(n)
    px = {t: (2 * NA * t - RING) * NB - 1 + delay for t in range(1, T)}
    for t in range(1, T):
        st = c.stamp(t) if getattr(c, "stamp", None) else []
        G.block(px[t], st + [wait_tag(("dma", t)), wait_ds(), barrier()])
    pre = [wait_tag(("dma", 0)), barrier()]
    def areads(i):
        t, r = divmod(i, 2 * NA); kk, a = divmod(r, NA)
        out = []
        for hh in range(2):
            addr, imm = c.aread(t, kk, a, hh)
            out.append(ds_read(c.ring[i % RING].sub(2 * hh, 2), addr, imm, tr=True))
        return out
    if c.bmode == "lds":
        for b in range(NB):
            addr, imm = c.bread(0, 0, b)
            pre.append(ds_read(c.breg(0, b), addr, imm))
    first = []
    for i in range(min(RING, 2 * NA * T)):
        first.append(areads(i))
    pre += first[0]
    for lst in first[1:]:
        pre += lst
    for i in range(RING, 2 * NA * T):
        t = i // (2 * NA)
        earliest = (i - RING + 1) * NB - 1
        latest = i * NB - 3
        if t >= 1: earliest = max(earliest, px[t] + 1)
        if t + 1 < T: latest = min(latest, px[t + 1] - 3)
        for ins in areads(i):
            G.put(ins, earliest, latest=latest)
    if c.bmode == "lds":
        for t in range(T):
            for kk in range(2):
                if t == 0 and kk == 0: continue
                s = t * 2 + kk
                earliest = (s - 1) * per_kk + 1
                if kk == 0: earliest = max(earliest, px[t] + 1)
                for b in range(NB):
                    addr, imm = c.bread(t, kk, b)
                    latest = s * per_kk + b - 3
                    if t + 1 < T: latest = min(latest, px[t + 1] - 3)
                    G.put(ds_read(c.breg(s & 1, b), addr, imm), earliest + (b if kk == 0 else 2 * b), latest=latest)
    else:
        for t in range(c.BD, T):
            g = (t - c.BD + 1) * 2 * per_kk
            step = max(1, (2 * per_kk - 8) // (2 * NB))
            for kk in range(2):
                for b in range(NB):
                    for ins in c.bload(t, kk, b):
                        g = G.put(ins, g)
                    g += step - 1
    for t in range(1, T):
        tt = t + NS - 1
        if tt >= T: continue
        groups = c.dma(tt)
        g = px[t] + 1
        span = getattr(c, "dma_span", 2 * per_kk - 12)
        step = max(2, span // len(groups))
        for grp in groups:
            g0 = g
            for ins in grp:
                if ins.kind == "salu":
                    g = G.put(ins, g)
                else:
                    g = G.put(ins, g + 1)
            g = max(g + 1, g0 + step)
    if extra:
        extra(G, main, px)
    return pre + interleave(main, G.items)
```

```python
from common import *
from gemm import *
import common, os

SRD_W, SRD_XN, SRD_HC, SRD_KA, SRD_KB = S(32, 4), S(36, 4), S(40, 4), S(44, 4), S(48, 4)
S_H, S_J, S_T0, S_T1, S_WL, S_SO, S_SB = S(52), S(53), S(56), S(57), S(58), S(59), S(60)
S_BL, S_BS, S_T, S_N, S_N1, S_I, S_HB, S_MK, S_G1, S_G2 = [S(61 + i) for i in range(10)]
S_OUT, S_PASS, S_T2 = S(54), S(55), S(31)
V_L, V_G, V_C, V_L16 = V(1), V(2), V(3), V(4)
V_DW = V(5)
V_AA = [V(6 + i) for i in range(8)]
V_KA, V_KB, V_VA, V_VB = V(14), V(15), V(16), V(17)
V_D = V(18)
TMP = 20
VQ = lambda qb, ds: V(64 + (qb * 4 + ds) * 4, 4)
VQS = lambda qb, ds: V(96 + (qb * 4 + ds) * 4, 4)
VS = lambda buf, kb2, qb: V(128 + ((buf * 2 + kb2) * 2 + qb) * 4, 4)
VP = lambda buf, qb: V(160 + (buf * 2 + qb) * 4, 4)
VNEG = lambda qb: V(176 + qb * 4, 4)
VONE = V(184, 4)
VB_ = lambda sg, d, r: V(188 + (sg * 3 + d + 1) * 4 + r)
AO = lambda db, qb: A((db * 2 + qb) * 4, 4)
AL = lambda qb: A(64 + qb * 4, 4)
RING = [A(72 + 4 * i, 4) for i in range(8)]
SZ = SZ_KV
WRING = 98304
QSCALE = 1.4426950408889634 / (128 ** 0.5)

def qacc(a, b):
    return V(128 + (a * 4 + b) * 4, 4)

def qcfg():
    c = Cfg()
    c.NA, c.NB, c.T, c.NS, c.BD = 8, 4, 9, 4, 3
    c.acc = qacc; c.swap = False
    c.ring = [A(4 * i, 4) for i in range(6)]
    c.bmode = "direct"
    c.breg = lambda t, kk, b: A(32 + (t % 3) * 32 + (kk * 4 + b) * 4, 4)
    c.aread = lambda t, kk, a, hh: (V_AA[a], (t % 4) * 16384 + kk * 8192 + hh * 1024)
    def bl(t, kk, b):
        base = S_BL if b < 2 else S_BS
        return [salu("s_add_u32", S_SB, base, (b & 1) * 18432 + t * 2048), bload(c.breg(t, kk, b), V_L16, SRD_XN, S_SB, kk * 1024)]
    c.bload = bl
    def dma_groups(t):
        return [[salu("s_add_u32", "m0", S_WL, WRING + (t % 4) * 16384 + j * 4096),
                 salu("s_mov_b32", S_SO, t * 524288 + j * 131072),
                 dma(V_DW, SRD_W, S_SO, tag=("dma", t))] for j in range(4)]
    c.dma = dma_groups
    c.delay = 6
    c.dma_span = 40
    return c

def kv_part(srd_, soff, ldsoff, tag):
    return [[salu("s_add_u32", "m0", S_MK, ldsoff) if tag != "abs" else salu("s_add_u32", "m0", S_T2, ldsoff),
             salu("s_add_u32", S_SO, soff[0], soff[1]), dma(V_L16, srd_, S_SO, 0, tag="kv")],
            [dma(V_L16, srd_, S_SO, 1024, tag="kv")], [dma(V_L16, srd_, S_SO, 2048, tag="kv")], [dma(V_L16, srd_, S_SO, 3072, tag="kv")]]

def unit_mfmas(sg, do_qk, do_pv):
    sb = (sg + 1) & 1
    pb = (sg - 1) & 1
    m = []; fr = []
    for half in range(2):
        if do_qk:
            for ds in range(4):
                pos = half * 8 + ds
                fr.append((pos, "k", (half, ds), len(m)))
                for qb in range(2):
                    acc = VS(sb, half, qb)
                    m.append(mfma(acc, RING[pos % 8], VQ(qb, ds), VNEG(qb) if ds == 0 else acc))
        if do_pv:
            for d in range(4):
                db = half * 4 + d; pos = half * 8 + 4 + d
                fr.append((pos, "v", db, len(m)))
                for qb in range(2):
                    m.append(mfma(AO(db, qb), RING[pos % 8], VP(pb, qb), AO(db, qb)))
    if do_pv:
        for qb in range(2):
            m.append(mfma(AL(qb), VONE, VP(pb, qb), AL(qb)))
    return m, fr

def frag_read(sg, kind, idx, pos, after_x):
    if kind == "k":
        half, ds = idx
        u = sg + 1
        nxt = u >= 4
        tile, hf = (u >> 1) & 1, u & 1
        off = tile * 16384 + (2 * hf + half) * 4096 + ds * 1024
        addr = V_KB if nxt else V_KA
    else:
        u = sg - 1
        tau = u >> 1 if u >= 0 else -1
        hf = u & 1
        grp_next = tau >= 1
        pos_t = (tau - 1) & 1
        off = pos_t * 16384 + (hf * 8 + idx) * 1024
        addr = V_VB if grp_next else V_VA
    assert (addr in (V_KB, V_VB)) == after_x, (sg, kind, idx)
    return ds_read(RING[pos % 8], addr, off)

def softmax_items(sg, masked):
    sb = sg & 1
    ex = []; cv = []; mk = []
    for qb in range(2):
        for kb2 in range(2):
            s = VS(sb, kb2, qb)
            for r in range(4):
                if masked: mk.append(valu("v_min_f32", s[r], s[r], VB_(sg, qb - kb2, r)))
                ex.append(valu("v_exp_f32", s[r], s[r]))
            for h in range(2):
                cv.append(valu("v_cvt_pk_bf16_f32", VP(sb, qb)[kb2 * 2 + h], s[2 * h], s[2 * h + 1]))
    return ex, cv, mk

def stream_scalars():
    return [salu("s_mov_b32", S_G1, S_G2),
            salu("s_add_u32", S_T0, S_N, 2), salu("s_sub_u32", S_T1, S_T0, S_N1), salu("s_cmp_lt_u32", None, S_T0, S_N1),
            salu("s_cselect_b32", S_T1, S_T0, S_T1), salu("s_lshl_b32", S_G2, S_T1, 16), salu("s_add_u32", S_G2, S_G2, S_HB),
            salu("s_cmp_le_u32", None, S_T0, 16), salu("s_cselect_b32", SRD_KB[2], SZ, 0),
            salu("s_cmp_le_u32", None, S_T0, 17), salu("s_cselect_b32", SRD_KA[2], SZ, 0)]

def body(last):
    main = []; frs = []; base = []
    for sg in range(4):
        m, fr = unit_mfmas(sg, do_qk=not (last and sg == 3), do_pv=True)
        base.append(len(main)); main += m
        frs.append(fr)
    if last:
        m, fr = unit_mfmas(4, do_qk=False, do_pv=True)
        base.append(len(main)); main += m; frs.append(fr)
    n = len(main)
    G = Gaps(n)
    seq = []
    for sg, fr in enumerate(frs):
        for (pos, kind, idx, g0) in fr: seq.append((sg, pos, kind, idx, base[sg] + g0))
    nslots = len(frs)
    if not last:
        m4, fr4 = unit_mfmas(0, True, True)
        for (pos, kind, idx, g0) in fr4:
            if pos < 8: seq.append((4, pos, kind, idx, n + g0))
    lastuse = {}
    for p in range(8): lastuse[p] = -1
    xgap = base[2] + 21
    G.block(xgap, [wait_tag("kv"), wait_ds(), barrier()])
    for k, (sg, pos, kind, idx, g0) in enumerate(seq):
        r = pos % 8
        if k >= 8:
            after_x = (kind == "k" and sg + 1 >= 4) or (kind == "v" and ((sg - 1) >> 1) >= 1)
            earliest = lastuse[r]
            if after_x: earliest = max(earliest, xgap + 1)
            latest = g0 - 3 if g0 < n else n - 1
            if not after_x: latest = min(latest, xgap - 3)
            G.put(frag_read(sg, kind, idx, pos, after_x), max(earliest, 0), latest=latest)
        lastuse[r] = g0 + 1
    for sg in range(4):
        ex, cv, mk = softmax_items(sg, last)
        end = (base[sg + 1] if sg + 1 < len(base) else n)
        g = base[sg]
        stepg = 2 if end - base[sg] >= 32 else 1
        egap = []
        for k, e in enumerate(ex):
            while G.vec.get(g, 0) != 0 and g < end - 2: g += 1
            g = min(g, end - 2)
            if mk:
                G.items.setdefault(g, []).append(mk[k])
            G.put_force(e, g, g); egap.append(g); g += stepg
        for k, c in enumerate(cv):
            G.put_force(c, min(egap[2 * k + 1] + 1, end - 1), end - 1)
    g = 2
    for ins in stream_scalars(): g = G.put(ins, g) + 1
    assert g < xgap
    parts = kv_part(SRD_KB, (S_G2, 0), 0, "k") + kv_part(SRD_KB, (S_G2, 32768), 16384, "k") \
        + kv_part(SRD_KA, (S_G1, 49152), 65536, "v") + kv_part(SRD_KB, (S_G2, 16384), 65536 + 16384, "v")
    g = xgap + 1
    for grp in parts:
        for ins in grp:
            g = G.put(ins, g + (0 if ins.kind == "salu" else 1))
        g += 1
    tail = [valu("v_xor_b32", x, 32768, x) for x in (V_KA, V_KB, V_VA, V_VB)]
    tail += [salu("s_xor_b32", S_MK, S_MK, 32768), salu("s_add_u32", S_N, S_N, 1)]
    assert g < n + 40, (g, n)
    return interleave(main, G.items) + tail

def tile_prologue(name):
    o = []
    o += [valu("v_accvgpr_write_b32", A(i), 0) for i in range(72)]
    o += [valu("v_mov_b32", VP(1, qb)[r], 0) for qb in range(2) for r in range(4)]
    for half in range(2):
        for ds in range(4):
            o.append(ds_read(RING[half * 4 + ds], V_KA, half * 4096 + ds * 1024))
    for half in range(2):
        for ds in range(4):
            for qb in range(2):
                acc = VS(0, half, qb)
                o.append(mfma(acc, RING[half * 4 + ds], VQ(qb, ds), 0 if ds == 0 else acc))
    m, fr = unit_mfmas(0, True, True)
    for (pos, kind, idx, g0) in fr:
        if pos < 8:
            o.append(frag_read(0, kind, idx, pos, False))
    o += [salu("s_cmp_lg_u32", None, S_T, 0), branch("s_cbranch_scc1", name + "_nomask")]
    o.append(nop(7))
    for qb in range(2):
        for kb2 in range(2):
            for r in range(4):
                s = VS(0, kb2, qb)
                o.append(valu("v_min_f32", s[r], s[r], VB_(0, qb - kb2, r)))
    o.append(label(name + "_nomask"))
    o.append(nop(7))
    for qb in range(2):
        m0, m1 = V(TMP + 2 * qb), V(TMP + 2 * qb + 1)
        s0, s1 = VS(0, 0, qb), VS(0, 1, qb)
        o += [valu("v_max3_f32", m0, s0[0], s0[1], s0[2]), valu("v_max3_f32", m0, m0, s0[3], s1[0]),
              valu("v_max3_f32", m0, m0, s1[1], s1[2]), valu("v_max_f32", m0, m0, s1[3])]
        o += [valu("v_mov_b32", m1, m0), valu("v_permlane16_swap_b32", m0, m1), valu("v_max_f32", m0, m0, m1),
              valu("v_mov_b32", m1, m0), valu("v_permlane32_swap_b32", m0, m1), valu("v_max_f32", m0, m0, m1)]
        for r in range(4): o.append(valu("v_sub_f32", VNEG(qb)[r], 0, m0))
        for s in (s0, s1):
            for r in range(4): o.append(valu("v_sub_f32", s[r], s[r], m0))
    o.append(waitcnt(lgkm=0))
    return o

def tile_epilogue():
    o = []
    for qb in range(2):
        rl = V(TMP + qb)
        o += [valu("v_accvgpr_read_b32", rl, AL(qb)[0]), valu("v_rcp_f32", rl, rl)]
    for qb in range(2):
        rl = V(TMP + qb)
        for ds in range(4):
            x = V(128 + ((qb * 4 + ds) % 4) * 8, 8)
            for hb in range(2):
                for r in range(4):
                    o.append(valu("v_accvgpr_read_b32", x[hb * 4 + r], AO(2 * ds + hb, qb)[r]))
            for k in range(8): o.append(valu("v_mul_f32", x[k], x[k], rl))
            for k in range(4): o.append(valu("v_cvt_pk_bf16_f32", x[k], x[2 * k], x[2 * k + 1]))
            o += [salu("s_add_u32", S_SO, S_OUT, qb * 278528), bstore(x.sub(0, 4), V_L16, SRD_HC, S_SO, ds * 1024, tag="ctx")]
    return o

def build(name="attn_kernel"):
    done = name + "_done"
    D = common.DIAG
    o = load_ptrs(256, done)
    if D: o += stamp(0) + stamp_rt(10)
    o += [valu("v_and_b32", V_L, 63, V(0)), valu("v_lshrrev_b32", V_G, 4, V_L), valu("v_and_b32", V_C, 15, V_L),
          valu("v_lshlrev_b32", V_L16, 4, V_L)]
    o += [salu("s_and_b32", S_T0, S_ID, 7), salu("s_lshr_b32", S_T1, S_ID, 3),
          salu("s_lshl_b32", S_H, S_T0, 2), salu("s_and_b32", S_T0, S_T1, 3), salu("s_add_u32", S_H, S_H, S_T0),
          salu("s_lshr_b32", S_J, S_T1, 2)]
    o += srd(SRD_W, P_WQ, 0, 576 * 8192) + srd(SRD_XN, P_WS, WS_XN, SZ_XN) + srd(SRD_HC, P_WS, WS_HC, SZ_HC)
    o += srd(SRD_KA, P_WS, WS_KV, SZ) + srd(SRD_KB, P_WS, WS_KV, SZ)
    o += [salu("s_sub_u32", S_T, 15, S_J), salu("s_add_u32", S_N1, S_T, 1),
          salu("s_lshl_b32", S_WL, S_W, 10),
          salu("s_lshl_b32", S_T0, S_T, 3), salu("s_lshl_b32", S_T1, S_W, 1), salu("s_add_u32", S_T0, S_T0, S_T1), salu("s_mul_i32", S_BL, S_T0, 18432),
          salu("s_lshl_b32", S_T0, S_J, 3), salu("s_add_u32", S_T0, S_T0, S_T1), salu("s_mul_i32", S_BS, S_T0, 18432),
          salu("s_lshl_b32", S_HB, S_H, 20), salu("s_lshl_b32", S_T0, S_W, 12), salu("s_add_u32", S_HB, S_HB, S_T0),
          salu("s_mov_b32", S_MK, S_T0), salu("s_mov_b32", S_T2, S_T0), salu("s_mov_b32", S_N, 0),
          salu("s_add_u32", S_G2, S_HB, 65536)]
    t = lambda i: V(TMP + i)
    o += [valu("v_lshrrev_b32", t(0), 4, V_L), salu("s_lshr_b32", S_T0, S_W, 1), salu("s_lshl_b32", S_T0, S_T0, 2),
          valu("v_or_b32", t(1), S_T0, t(0)), valu("v_bfe_u32", t(2), V_L, 1, 3), valu("v_xor_b32", t(2), t(2), t(1)),
          salu("s_lshl_b32", S_T0, S_W, 2), valu("v_add_u32", t(0), S_T0, t(0)), valu("v_lshlrev_b32", t(0), 13, t(0)),
          valu("v_and_b32", t(3), 1, V_L), valu("v_lshl_add_u32", t(0), t(3), 4, t(0)), valu("v_lshl_add_u32", t(0), t(2), 5, t(0)),
          salu("s_lshl_b32", S_T0, S_H, 8), valu("v_add_u32", V_DW, S_T0, t(0))]
    c = qcfg()
    for tt in range(4):
        for grp in c.dma(tt): o += grp[:-1] + [nop(0)] + grp[-1:]
        if tt < 3:
            for kk in range(2):
                for b in range(4): o += c.bload(tt, kk, b)
    def lin(parts):
        r = []
        for grp in parts:
            if len(grp) > 1: r += grp[:-1] + [nop(0)] + grp[-1:]
            else: r += grp
        return r
    o += lin(kv_part(SRD_KB, (S_HB, 0), 0, "abs") + kv_part(SRD_KB, (S_HB, 32768), 16384, "abs")
             + kv_part(SRD_KB, (S_HB, 16384), 65536, "abs") + kv_part(SRD_KB, (S_HB, 16384), 65536 + 16384, "abs")
             + kv_part(SRD_KB, (S_HB, 65536), 32768, "abs") + kv_part(SRD_KB, (S_HB, 65536 + 32768), 32768 + 16384, "abs"))
    o += [valu("v_lshrrev_b32", t(0), 2, V_C), valu("v_and_b32", t(1), 1, V_G), valu("v_lshl_or_b32", t(1), t(1), 2, t(0)),
          valu("v_lshl_add_u32", t(0), V_G, 3, t(0)), valu("v_lshlrev_b32", t(0), 8, t(0)),
          valu("v_and_b32", t(2), 3, V_C), valu("v_lshl_add_u32", t(0), t(2), 3, t(0)), valu("v_add_u32", t(0), WRING, t(0))]
    for x in range(8):
        o += [valu("v_xor_b32", t(2), x, t(1)), valu("v_lshl_add_u32", V_AA[x], t(2), 5, t(0))]
    o += [valu("v_mov_b32", V_KA, V_L16), valu("v_xor_b32", V_KB, 32768, V_L16),
          valu("v_add_u32", V_VA, 65536, V_L16), valu("v_xor_b32", V_VB, 32768, V_VA),
          valu("v_lshlrev_b32", V_D, 2, V_G), valu("v_sub_u32", V_D, V_D, V_C)]
    main = gemm_main(c)
    if D: main = main[:2] + stamp(1) + main[2:] + stamp(2)
    o += main
    o += [wait_ds(), barrier()]
    o += lin(kv_part(SRD_KB, (S_HB, 32768 + 16384), 98304, "abs") + kv_part(SRD_KB, (S_HB, 65536 + 16384), 98304 + 16384, "abs"))
    sc = V(TMP, 2)
    o += [valu("v_mov_b32", sc[0], QSCALE), valu("v_mov_b32", sc[1], QSCALE)]
    for b in range(4):
        for ds in range(4):
            dst = VQ(b, ds) if b < 2 else VQS(b - 2, ds)
            for hb in range(2):
                a_ = qacc(2 * ds + hb, b)
                for h in range(2):
                    o.append(valu("v_pk_mul_f32", a_.sub(2 * h, 2), a_.sub(2 * h, 2), sc))
                for h in range(2):
                    o.append(valu("v_cvt_pk_bf16_f32", dst[hb * 2 + h], a_[2 * h], a_[2 * h + 1]))
    o += [valu("v_mov_b32", VONE[r], 0x3f803f80) for r in range(4)]
    o += [salu("s_lshl_b32", S_T1, S_W, 5), valu("v_mov_b32", t(0), 0x7f800000), valu("v_mov_b32", t(1), 0xff800000)]
    for sg in range(4):
        for d in (-1, 0, 1):
            for r in range(4):
                o += [salu("s_add_i32", S_T0, S_T1, -32 * sg + 16 * d - r), valu("v_cmp_ge_i32", "vcc", S_T0, V_D),
                      valu("v_cndmask_b32", VB_(sg, d, r), t(1), t(0), "vcc")]
    o += [salu("s_mov_b32", S_PASS, 0)]
    o += [waitcnt(vm=8), barrier()]
    if D: o += stamp(3)
    head, lg, vm = finalize(o)
    L = lambda s: name + "_" + s
    pro = [label(L("tile"))]
    pro += [salu("s_lshl_b32", S_T0, S_T, 3), salu("s_lshl_b32", S_T1, S_W, 1), salu("s_add_u32", S_T0, S_T0, S_T1),
            salu("s_mul_i32", S_OUT, S_T0, 278528), salu("s_lshl_b32", S_T0, S_H, 12), salu("s_add_u32", S_OUT, S_OUT, S_T0)]
    pro += tile_prologue(name)
    pro += [salu("s_mov_b32", S_I, S_T), salu("s_cmp_eq_u32", None, S_T, 0), branch("s_cbranch_scc1", L("last"))]
    pro, _, _ = finalize(pro)
    b1 = body(False)
    two, lg2, vm2 = insert_waits(b1 + [label("x")] + body(False))
    cut = [k for k, i in enumerate(two) if i.kind == "label" and i.text == "x:"][0]
    steady = two[cut + 1:]
    steady = insert_nops(steady, steady[-12:])
    loop = [label(L("loop"))] + steady + [salu("s_sub_u32", S_I, S_I, 1), salu("s_cmp_lg_u32", None, S_I, 0), branch("s_cbranch_scc1", L("loop"))]
    tail = body(True)
    if D: tail += [salu("s_cmp_eq_u32", None, S_PASS, 0), branch("s_cbranch_scc0", L("ns"))] + stamp(4) + [label(L("ns"))]
    tail += tile_epilogue()
    if D: tail += [salu("s_cmp_eq_u32", None, S_PASS, 0), branch("s_cbranch_scc0", L("ns2"))] + stamp(5) + [label(L("ns2"))]
    tail += [salu("s_cmp_eq_u32", None, S_PASS, 1), branch("s_cbranch_scc1", L("fin")),
             salu("s_mov_b32", S_PASS, 1), salu("s_mov_b32", S_T, S_J)]
    tail += [valu("v_mov_b32", VQ(qb, ds)[r], VQS(qb, ds)[r]) for qb in range(2) for ds in range(4) for r in range(4)]
    tail += [branch("s_branch", L("tile"))]
    tl, _, _ = insert_waits(tail, lg2, vm2)
    tl = insert_nops([label(L("last"))] + tl, steady[-12:])
    fin = [label(L("fin"))]
    if D: fin += stamp(6) + [waitcnt(vm=0)] + stamp(7) + stamp(8) + stamp(9) + stamp_rt(11) + stamp_out(12)
    fin += [raw("s_endpgm", "other")]
    fin, _, _ = finalize(fin)
    return head + pro + loop + tl + fin + [label(done), raw("s_endpgm", "other")]

if __name__ == "__main__":
    import sys
    common.DIAG = int(sys.argv[1]) if len(sys.argv) > 1 else 0
    if common.DIAG: common.STAMP_BASE = 74
    ins = build()
    s = "; @launch kernel=attn_kernel grid=(256,1,1) block=(256,1,1) lds=163840\n" + PRELUDE + kernel_text("attn_kernel", ins)
    s += '.section .rodata,"a"\n' + descriptor("attn_kernel", nsgpr=102)
    open("attn.s", "w").write(s)
    print(len(ins), "instructions", len(s), "bytes")
```

```python
from common import *
from gemm import *
from k_gu import w320_dma_addrs
import common, os

SRD_WD, SRD_WO, SRD_HC, SRD_P = S(32, 4), S(36, 4), S(40, 4), S(44, 4)
S_NT, S_MT, S_SP, S_T0, S_T1, S_WL, S_SO, S_SB = S(52), S(53), S(54), S(56), S(57), S(58), S(59), S(60)
S_BH, S_BC, S_OUT, S_WB, S_PAR, S_P64, S_WDO, S_WOO = [S(61 + i) for i in range(8)]
V_L, V_G, V_C, V_L16 = V(1), V(2), V(3), V(4)
V_DW = [V(5 + j) for j in range(5)]
NS = 4
V_AA = [[V(10 + 2 * st + p) for p in range(2)] for st in range(NS)]
STG = 20480
TMP = 20
NH = 9

def acc(a, b): return V(32 + (a * 4 + b) * 4, 4)

def cfg():
    c = Cfg()
    c.NA, c.NB, c.T, c.NS, c.BD = 9, 4, 17, NS, 3
    c.acc = acc; c.swap = False
    c.ring = [A(4 * i, 4) for i in range(6)]
    c.bmode = "direct"
    c.breg = lambda t, kk, b: A(32 + (t % 3) * 32 + (kk * 4 + b) * 4, 4)
    c.aread = lambda t, kk, a, hh: (V_AA[t % NS][a & 1], kk * 10240 + hh * 5120 + (a - (a & 1)) * 32)
    def bl(t, kk, b):
        base, tt = (S_BH, t) if t < NH else (S_BC, t - NH)
        return [salu("s_add_u32", S_SB, base, b * 278528 + tt * 2048), bload(c.breg(t, kk, b), V_L16, SRD_HC, S_SB, kk * 1024)]
    c.bload = bl
    def dma_groups(t):
        srd_, base, tt = (SRD_WD, S_WDO, t) if t < NH else (SRD_WO, S_WOO, t - NH)
        g = []
        for j in range(5):
            grp = [salu("s_add_u32", S_SO, base, tt * 73728)] if j == 0 else []
            grp += [salu("s_add_u32", "m0", S_WL, (t % NS) * STG + j * 1024), dma(V_DW[j], srd_, S_SO, tag=("dma", t))]
            g.append(grp)
        return g
    c.dma = dma_groups
    c.delay = 6
    c.dma_span = 40
    if common.DIAG == 2: c.stamp = lambda t: stamp_nw(t + 1) if t < 12 else []
    return c

def build(name="fin_kernel"):
    done = name + "_done"
    D = common.DIAG
    o = load_ptrs(256, done)
    if D: o += stamp(0) + stamp_rt(4)
    o += [valu("v_and_b32", V_L, 63, V(0)), valu("v_lshrrev_b32", V_G, 4, V_L), valu("v_and_b32", V_C, 15, V_L),
          valu("v_lshlrev_b32", V_L16, 4, V_L)]
    o += [salu("s_and_b32", S_SP, S_ID, 7), salu("s_lshr_b32", S_T1, S_ID, 3),
          salu("s_and_b32", S_NT, S_T1, 3), salu("s_lshr_b32", S_MT, S_T1, 2)]
    o += srd(SRD_WD, P_WD, 0, 4608 * 1152) + srd(SRD_WO, P_WO, 0, 4096 * 1152)
    o += srd(SRD_HC, P_WS, WS_HC, SZ_HC) + srd(SRD_P, P_WS, WS_PART, SZ_PART)
    o += [salu("s_mul_i32", S_WL, S_W, 5120), salu("s_mul_i32", S_P64, S_W, 320),
          salu("s_and_b32", S_PAR, S_NT, 1), salu("s_mul_i32", S_WB, S_NT, 288), salu("s_lshl_b32", S_T0, S_PAR, 5),
          salu("s_sub_u32", S_WB, S_WB, S_T0),
          salu("s_mul_i32", S_WDO, S_SP, 576 * 1152), salu("s_mul_i32", S_WOO, S_SP, 512 * 1152)]
    o += w320_dma_addrs(V_DW, 5, S_P64, 1152, 2, S_WB, TMP, S_T0, S_T1, V_L)
    o += [salu("s_lshl_b32", S_T0, S_MT, 4), salu("s_lshl_b32", S_T1, S_W, 2), salu("s_add_u32", S_T0, S_T0, S_T1),
          salu("s_mul_i32", S_BC, S_T0, 278528),
          salu("s_mul_i32", S_T1, S_SP, 18 * 1024), salu("s_add_u32", S_BH, S_BC, S_T1), salu("s_add_u32", S_BH, S_BH, 128 * 1024),
          salu("s_lshl_b32", S_T1, S_SP, 14), salu("s_add_u32", S_BC, S_BC, S_T1),
          salu("s_lshr_b32", S_T0, S_T0, 1), salu("s_lshl_b32", S_T1, S_SP, 6), salu("s_add_u32", S_T0, S_T0, S_T1),
          salu("s_mul_i32", S_T0, S_T0, 36), salu("s_mul_i32", S_T1, S_NT, 9), salu("s_add_u32", S_T0, S_T0, S_T1),
          salu("s_lshl_b32", S_OUT, S_T0, 10)]
    c = cfg()
    for tt in range(NS):
        for grp in c.dma(tt): o += grp[:-1] + [nop(0)] + grp[-1:]
        if tt < 3:
            for kk in range(2):
                for b in range(4): o += c.bload(tt, kk, b)
    t = lambda i: V(TMP + i)
    o += [valu("v_lshrrev_b32", t(0), 2, V_C), valu("v_lshl_add_u32", t(0), V_G, 2, t(0)), valu("v_mul_u32_u24", t(0), 320, t(0)),
          valu("v_and_b32", t(1), 3, V_C), valu("v_lshl_add_u32", t(0), t(1), 3, t(0)), valu("v_and_b32", t(1), 1, V_G)]
    for p in range(2):
        o += [salu("s_add_u32", S_T0, S_PAR, p), valu("v_xor_b32", t(2), S_T0, t(1)), valu("v_lshl_add_u32", t(2), t(2), 5, t(0))]
        for st in range(NS):
            o += [valu("v_add_u32", V_AA[st][p], st * STG, t(2)) if st else valu("v_mov_b32", V_AA[st][p], t(2))]
    main = gemm_main(c)
    if D == 1: main = main[:2] + stamp(1) + main[2:] + stamp(2)
    o += main
    for p in range(2):
        for a in range(9):
            x, y = acc(a, 2 * p), acc(a, 2 * p + 1)
            o += [valu("v_cvt_pk_bf16_f32", x[0], x[0], x[1]), valu("v_cvt_pk_bf16_f32", x[1], x[2], x[3]),
                  valu("v_cvt_pk_bf16_f32", x[2], y[0], y[1]), valu("v_cvt_pk_bf16_f32", x[3], y[2], y[3])]
            off = p * 36 * 1024 + a * 1024
            o += [salu("s_add_u32", S_SO, S_OUT, off & ~4095), bstore(x, V_L16, SRD_P, S_SO, off & 4095)]
    if D == 1: o += [waitcnt(vm=0)] + stamp(3) + stamp_rt(5) + stamp_out(6)
    o.append(raw("s_endpgm", "other"))
    ins, _, _ = finalize(o)
    return ins + [label(done), raw("s_endpgm", "other")]

def build_red(name="red_kernel"):
    done = name + "_done"
    SRD_X, SRD_O = S(32, 4), S(36, 4)
    o = load_ptrs(576, done)
    o += [valu("v_and_b32", V_L, 63, V(0)), valu("v_lshrrev_b32", V_G, 4, V_L), valu("v_and_b32", V_C, 15, V_L),
          valu("v_lshlrev_b32", V_L16, 4, V_L)]
    o += srd(SRD_X, P_X, 0, 2048 * 1152) + srd(SRD_O, P_OUT, 0, 2048 * 1152) + srd(SRD_P, P_WS, WS_PART, SZ_PART)
    S_IT, S_MP, S_NB = S(52), S(53), S(54)
    o += [salu("s_lshl_b32", S_IT, S_ID, 2), salu("s_add_u32", S_IT, S_IT, S_W),
          salu("s_mul_i32", S_MP, S_IT, 1821), salu("s_lshr_b32", S_MP, S_MP, 16),
          salu("s_mul_i32", S_T0, S_MP, 36), salu("s_sub_u32", S_NB, S_IT, S_T0),
          salu("s_lshl_b32", S_SO, S_IT, 10)]
    P = [V(32 + 4 * s, 4) for s in range(8)]
    for s in range(8):
        o += [salu("s_add_u32", S_T0, S_SO, s * 64 * 36 * 1024), bload(P[s], V_L16, SRD_P, S_T0)]
    vo = V(8)
    o += [salu("s_lshl_b32", S_T0, S_MP, 5), valu("v_add_u32", vo, S_T0, V_C), salu("s_movk_i32", S_T1, 1152), valu("v_mul_lo_u32", vo, vo, S_T1),
          valu("v_lshl_add_u32", vo, V_G, 3, vo), salu("s_lshl_b32", S_T0, S_NB, 5), valu("v_add_u32", vo, S_T0, vo),
          valu("v_add_u32", V(9), 16 * 1152, vo)]
    X = V(12, 4)
    o += [bload(X.sub(0, 2), vo, SRD_X, 0), bload(X.sub(2, 2), V(9), SRD_X, 0)]
    accs = [V(16 + i) for i in range(8)]
    tmp = V(24)
    for d in range(4):
        o += [valu("v_lshlrev_b32", accs[2 * d], 16, P[0][d]), valu("v_and_b32", accs[2 * d + 1], 0xffff0000, P[0][d])]
    for s in range(1, 8):
        for d in range(4):
            o += [valu("v_lshlrev_b32", tmp, 16, P[s][d]), valu("v_add_f32", accs[2 * d], accs[2 * d], tmp),
                  valu("v_and_b32", tmp, 0xffff0000, P[s][d]), valu("v_add_f32", accs[2 * d + 1], accs[2 * d + 1], tmp)]
    for d in range(4):
        o += [valu("v_lshlrev_b32", tmp, 16, X[d]), valu("v_add_f32", accs[2 * d], accs[2 * d], tmp),
              valu("v_and_b32", tmp, 0xffff0000, X[d]), valu("v_add_f32", accs[2 * d + 1], accs[2 * d + 1], tmp)]
    for d in range(4):
        o.append(valu("v_cvt_pk_bf16_f32", X[d], accs[2 * d], accs[2 * d + 1]))
    o += [bstore(X.sub(0, 2), vo, SRD_O, 0), bstore(X.sub(2, 2), V(9), SRD_O, 0), raw("s_endpgm", "other")]
    ins, _, _ = finalize(o)
    return ins + [label(done), raw("s_endpgm", "other")]

if __name__ == "__main__":
    import sys
    common.DIAG = int(sys.argv[1]) if len(sys.argv) > 1 else 0
    ins = build(); red = build_red()
    s = "; @launch kernel=fin_kernel grid=(256,1,1) block=(256,1,1) lds=81920\n; @launch kernel=red_kernel grid=(576,1,1) block=(256,1,1) lds=0\n"
    s += PRELUDE + kernel_text("fin_kernel", ins) + kernel_text("red_kernel", red)
    s += '.section .rodata,"a"\n' + descriptor("fin_kernel", nsgpr=102) + descriptor("red_kernel", 64, 64, nsgpr=72)
    open("fin.s", "w").write(s)
    print(len(ins), len(red), "instructions", len(s), "bytes")
```

```python
from common import *
from gemm import *
import common, os

SRD_W, SRD_XN, SRD_HC = S(32, 4), S(36, 4), S(40, 4)
S_NT, S_MT, S_T0, S_T1, S_WL, S_SO, S_SB, S_B0, S_OUT = S(52), S(53), S(56), S(57), S(58), S(59), S(60), S(61), S(62)
V_L, V_G, V_C, V_L16 = V(1), V(2), V(3), V(4)
V_DW = [V(5 + j) for j in range(10)]
V_AA = [[V(15 + 2 * st + p) for p in range(2)] for st in range(3)]
STG = 40960
TMP = 32

def lane_consts():
    return [valu("v_and_b32", V_L, 63, V(0)), valu("v_lshrrev_b32", V_G, 4, V_L), valu("v_and_b32", V_C, 15, V_L),
            valu("v_lshlrev_b32", V_L16, 4, V_L)]

def accgu(mat, a, b):
    i = (a * 2 + mat) * 4 + b
    return V(32 + 4 * i, 4) if i < 56 else A(4 * (i - 56), 4)

def w320_dma_addrs(dst, npieces, piece0_sgpr_mul, rowstride, bshift, S_WB, tmp, S_T0, S_T1, V_L):
    t = lambda i: V(tmp + i)
    o = []
    for j in range(npieces):
        o += [valu("v_add_u32", t(0), piece0_sgpr_mul, V_L)]
        if j: o += [valu("v_add_u32", t(0), 64 * j, t(0))]
        o += [valu("v_mul_u32_u24", t(1), 3277, t(0)), valu("v_lshrrev_b32", t(1), 16, t(1)),
              valu("v_mul_u32_u24", t(2), 20, t(1)), valu("v_sub_u32", t(2), t(0), t(2)),
              valu("v_bfe_u32", t(3), t(1), bshift, 1), valu("v_lshlrev_b32", t(3), 1, t(3)), valu("v_xor_b32", t(2), t(2), t(3)),
              salu("s_movk_i32", S_T0, rowstride), valu("v_mul_lo_u32", t(1), t(1), S_T0),
              valu("v_lshl_add_u32", t(1), t(2), 4, t(1)), valu("v_add_u32", dst[j], S_WB, t(1))]
    return o

def cfg():
    c = Cfg()
    c.NA, c.NB, c.T, c.NS, c.BD = 18, 4, 9, 3, 3
    c.acc = lambda ai, b: accgu(ai & 1, ai >> 1, b)
    c.swap = False
    c.ring = [A(64 + 4 * i, 4) for i in range(6)]
    c.bmode = "direct"
    c.breg = lambda t, kk, b: A(88 + (t % 3) * 32 + (kk * 4 + b) * 4, 4)
    def aread(t, kk, ai, hh):
        mat, a = ai & 1, ai >> 1
        return V_AA[t % 3][a & 1], mat * 20480 + kk * 10240 + hh * 1280 + (a - (a & 1)) * 32
    c.aread = aread
    def bload(t, kk, b):
        o = []
        if kk == 0: pass
        o.append(salu("s_add_u32", S_SB, S_B0, b * 18432 + t * 2048))
        o.append(bload_(c.breg(t, kk, b), V_L16, SRD_XN, S_SB, kk * 1024))
        return o
    c.bload = bload
    def dma_groups(t):
        return [[salu("s_add_u32", "m0", S_WL, (t % 3) * STG + j * 1024),
                 dma(V_DW[j], SRD_W, S_SO, tag=("dma", t))] if j else
                [salu("s_mov_b32", S_SO, t * 589824), salu("s_add_u32", "m0", S_WL, (t % 3) * STG),
                 dma(V_DW[j], SRD_W, S_SO, tag=("dma", t))] for j in range(10)]
    c.dma = dma_groups
    c.delay = 8
    c.dma_span = 90
    if common.DIAG == 2: c.stamp = lambda t: stamp_nw(t + 1)
    return c
bload_ = bload

C0 = -2.0 * 0.7978845608028654 * 1.4426950408889634
C1 = C0 * 0.044715

def hp(b, a):
    return V(32 + (b * 18 + 2 * a), 2)

def epilogue(name):
    o = []
    kc0, kc1, kone = V(6, 2), V(8, 2), V(10, 2)
    o += [valu("v_mov_b32", kc0[0], C0), valu("v_mov_b32", kc0[1], C0), valu("v_mov_b32", kc1[0], C1), valu("v_mov_b32", kc1[1], C1),
          valu("v_mov_b32", kone[0], 1.0), valu("v_mov_b32", kone[1], 1.0)]
    tg, tu = V(12, 4), V(16, 4)
    t1, t2 = V(20, 4), V(24, 4)
    res = {}
    for a in range(9):
        for b in range(4):
            g, u = accgu(0, a, b), accgu(1, a, b)
            if g.k == "a":
                o += [valu("v_accvgpr_read_b32", tg[r], g[r]) for r in range(4)]; g = tg
            if u.k == "a":
                o += [valu("v_accvgpr_read_b32", tu[r], u[r]) for r in range(4)]; u = tu
            for h in range(2):
                gp, up = g.sub(2 * h, 2), u.sub(2 * h, 2)
                x, y = t1.sub(2 * h, 2), t2.sub(2 * h, 2)
                o += [valu("v_pk_mul_f32", x, gp, gp), valu("v_pk_mul_f32", y, gp, up)]
            for h in range(2):
                x = t1.sub(2 * h, 2)
                o += [valu("v_pk_fma_f32", x, x, kc1, kc0)]
            for h in range(2):
                gp = g.sub(2 * h, 2); x = t1.sub(2 * h, 2)
                o += [valu("v_pk_mul_f32", x, x, gp)]
            o += [valu("v_exp_f32", t1[r], t1[r]) for r in range(4)]
            for h in range(2):
                x = t1.sub(2 * h, 2)
                o += [valu("v_pk_add_f32", x, x, kone)]
            o += [valu("v_rcp_f32", t1[r], t1[r]) for r in range(4)]
            for h in range(2):
                x, y = t1.sub(2 * h, 2), t2.sub(2 * h, 2)
                o += [valu("v_pk_mul_f32", y, y, x)]
            o += [valu("v_cvt_pk_bf16_f32", t1[0], t2[0], t2[1]), valu("v_cvt_pk_bf16_f32", t1[1], t2[2], t2[3])]
            dst = A(88 + b * 18 + 2 * a, 2)
            o += [valu("v_accvgpr_write_b32", dst[0], t1[0]), valu("v_accvgpr_write_b32", dst[1], t1[1])]
    def stores(par):
        s = []
        for b in range(4):
            base = 88 + 18 * b
            s.append(salu("s_add_u32", S_SO, S_OUT, b * 278528))
            if par == 0:
                for p in range(4): s.append(bstore(A(base + 4 * p, 4), V_L16, SRD_HC, S_SO, p * 1024))
                s.append(salu("s_add_u32", S_SO, S_SO, 4096)); s.append(bstore(A(base + 16, 2), V_L16, SRD_HC, S_SO, 0))
            else:
                s.append(bstore(A(base, 2), V_L16, SRD_HC, S_SO, 8))
                for p in range(3): s.append(bstore(A(base + 2 + 4 * p, 4), V_L16, SRD_HC, S_SO, (p + 1) * 1024))
                s.append(salu("s_add_u32", S_SO, S_SO, 4096)); s.append(bstore(A(base + 14, 4), V_L16, SRD_HC, S_SO, 0))
        return s
    return o, stores

def build(name="gu_kernel"):
    done = name + "_done"
    D = common.DIAG
    o = load_ptrs(256, done)
    if D == 2: o += stamp(0) + stamp_rt(12)
    o += lane_consts()
    o += [salu("s_and_b32", S_T0, S_ID, 7), salu("s_lshr_b32", S_T1, S_ID, 3),
          salu("s_lshl_b32", S_NT, S_T0, 2), salu("s_and_b32", S_T0, S_T1, 3), salu("s_add_u32", S_NT, S_NT, S_T0),
          salu("s_lshr_b32", S_MT, S_T1, 2)]
    o += [salu("s_cmp_ge_u32", None, S_W, 2),
          salu("s_cselect_b32", S_T0, P_WU[0], P_WG[0]), salu("s_cselect_b32", S_T1, P_WU[1], P_WG[1]),
          salu("s_mov_b32", SRD_W[0], S_T0), salu("s_mov_b32", SRD_W[1], S_T1), salu("s_mov_b32", SRD_W[2], 576 * 9216),
          salu("s_mov_b32", SRD_W[3], 0x20000)]
    o += srd(SRD_XN, P_WS, WS_XN, SZ_XN) + srd(SRD_HC, P_WS, WS_HC, SZ_HC)
    S_WB, S_PAR, S_P64 = S(63), S(64), S(65)
    o += [salu("s_lshr_b32", S_T0, S_W, 1), salu("s_mul_i32", S_WL, S_T0, 20480), salu("s_and_b32", S_T0, S_W, 1),
          salu("s_mul_i32", S_P64, S_T0, 640), salu("s_mul_i32", S_T0, S_T0, 10240), salu("s_add_u32", S_WL, S_WL, S_T0),
          salu("s_and_b32", S_PAR, S_NT, 1), salu("s_mul_i32", S_WB, S_NT, 288), salu("s_lshl_b32", S_T0, S_PAR, 5),
          salu("s_sub_u32", S_WB, S_WB, S_T0)]
    o += w320_dma_addrs(V_DW, 10, S_P64, 9216, 3, S_WB, TMP, S_T0, S_T1, V_L)
    o += [salu("s_lshl_b32", S_T0, S_MT, 4), salu("s_lshl_b32", S_T1, S_W, 2), salu("s_add_u32", S_T0, S_T0, S_T1),
          salu("s_mul_i32", S_B0, S_T0, 18432),
          salu("s_mul_i32", S_OUT, S_T0, 278528),
          salu("s_mul_i32", S_T1, S_NT, 9), salu("s_lshr_b32", S_T1, S_T1, 1), salu("s_add_u32", S_T1, S_T1, 128),
          salu("s_lshl_b32", S_T1, S_T1, 10), salu("s_add_u32", S_OUT, S_OUT, S_T1)]
    c = cfg()
    for tt in range(3):
        for grp in c.dma(tt): o += grp[:-1] + [nop(0)] + grp[-1:]
        for kk in range(2):
            for b in range(4): o += c.bload(tt, kk, b)
    t = lambda i: V(TMP + i)
    o += [valu("v_lshrrev_b32", t(0), 2, V_C), valu("v_lshl_add_u32", t(0), V_G, 3, t(0)), valu("v_mul_u32_u24", t(0), 320, t(0)),
          valu("v_and_b32", t(1), 3, V_C), valu("v_lshl_add_u32", t(0), t(1), 3, t(0)), valu("v_and_b32", t(1), 1, V_G)]
    for p in range(2):
        o += [salu("s_add_u32", S_T0, S_PAR, p), valu("v_xor_b32", t(2), S_T0, t(1)), valu("v_lshl_add_u32", t(2), t(2), 5, t(0))]
        for st in range(3):
            o += [valu("v_add_u32", V_AA[st][p], st * STG, t(2)) if st else valu("v_mov_b32", V_AA[st][p], t(2))]
    main = gemm_main(c)
    if D == 2: main = main[:2] + stamp(1) + main[2:] + stamp(10)
    epi, stores = epilogue(name)
    o += main + epi
    if D == 2: o += stamp(11)
    o += [salu("s_cmp_eq_u32", None, S_PAR, 1), branch("s_cbranch_scc1", name + "_odd")]
    pro, lg, vm = finalize(o)
    parts = [pro]
    for par in range(2):
        body = stores(par)
        if D == 2: body += [waitcnt(vm=0)] + stamp_rt(13) + stamp_out(14)
        body.append(raw("s_endpgm", "other"))
        b, _, _ = insert_waits(body, lg, vm)
        b = insert_nops(b, pro[-12:])
        parts.append(([label(name + "_odd")] if par else []) + b)
    return parts[0] + parts[1] + parts[2] + [label(done), raw("s_endpgm", "other")]

if __name__ == "__main__":
    import sys
    common.DIAG = int(sys.argv[1]) if len(sys.argv) > 1 else 0
    ins = build()
    s = "; @launch kernel=gu_kernel grid=(256,1,1) block=(256,1,1) lds=122880\n" + PRELUDE + kernel_text("gu_kernel", ins)
    s += '.section .rodata,"a"\n' + descriptor("gu_kernel", nsgpr=102)
    open("gu.s", "w").write(s)
    print(len(ins), "instructions", len(s), "bytes")
```

```python
from common import *
from gemm import *
import common, os

SRD_W, SRD_AC, SRD_X, SRD_XN, SRD_KV = S(32, 4), S(36, 4), S(40, 4), S(44, 4), S(48, 4)
S_NT, S_MT, S_WN, S_WM, S_T0, S_T1, S_WL, S_SO = S(52), S(53), S(54), S(55), S(56), S(57), S(58), S(59)
S_WOFF, S_AOFF, S_T2, S_OUT = S(60), S(61), S(62), S(63)
V_L, V_G, V_C = V(1), V(2), V(3)
V_L16 = V(4)
V_DW = [V(5), V(6)]
V_DA = V(7)
V_AA = [V(8 + i) for i in range(8)]
V_BA = [V(16), V(17)]
TMP = 32

def lane_consts():
    return [valu("v_and_b32", V_L, 63, V(0)), valu("v_lshrrev_b32", V_G, 4, V_L), valu("v_and_b32", V_C, 15, V_L),
            valu("v_lshlrev_b32", V_L16, 4, V_L)]

def layernorm():
    o = []
    t = lambda i, n=1: V(TMP + i, n)
    vi, vrow, voff, voff3, vmask = t(0), t(1), t(2), t(3), t(4)
    X = [t(8 + 4 * j, 4) for j in range(3)]
    Fx = [t(24 + i) for i in range(24)]
    acc, tmp, tm2 = t(48), t(49), t(50)
    o += [valu("v_and_b32", vi, 31, V_L), valu("v_lshrrev_b32", vrow, 5, V_L),
          salu("s_lshl_b32", S_T0, S_ID, 3), salu("s_lshl_b32", S_T1, S_W, 1), salu("s_add_u32", S_T0, S_T0, S_T1),
          valu("v_add_u32", vrow, S_T0, vrow),
          salu("s_movk_i32", S_T1, 1152), valu("v_mul_lo_u32", voff, vrow, S_T1),
          valu("v_lshl_add_u32", voff, vi, 4, voff),
          valu("v_cmp_gt_u32", "vcc", 8, vi),
          valu("v_add_u32", voff3, 1024, voff), valu("v_mov_b32", tmp, 0x7ff00000),
          valu("v_cndmask_b32", voff3, tmp, voff3, "vcc")]
    o += [bload(X[0], voff, SRD_X, 0), bload(X[1], voff, SRD_X, 0, 512), bload(X[2], voff3, SRD_X, 0)]
    for j in range(3):
        for d in range(4):
            o += [valu("v_lshlrev_b32", Fx[8 * j + 2 * d], 16, X[j][d]), valu("v_and_b32", Fx[8 * j + 2 * d + 1], 0xffff0000, X[j][d])]
    def rowsum(x):
        r = []
        for sh in (8, 4, 2, 1):
            r.append(valu("v_add_f32_dpp", x, x, x, suffix=" row_ror:%d row_mask:0xf bank_mask:0xf" % sh))
        r += [valu("v_mov_b32", tm2, x), valu("v_permlane16_swap_b32", x, tm2), valu("v_add_f32", x, x, tm2)]
        return r
    o.append(valu("v_add_f32", acc, Fx[0], Fx[1]))
    for i in range(2, 24): o.append(valu("v_add_f32", acc, acc, Fx[i]))
    o += rowsum(acc)
    o.append(valu("v_mul_f32", acc, 1.0 / 576, acc))
    for i in range(24): o.append(valu("v_sub_f32", Fx[i], Fx[i], acc))
    for i in range(16, 24): o.append(valu("v_cndmask_b32", Fx[i], 0, Fx[i], "vcc"))
    o.append(valu("v_mul_f32", acc, Fx[0], Fx[0]))
    for i in range(1, 24): o.append(valu("v_fmac_f32", acc, Fx[i], Fx[i]))
    o += rowsum(acc)
    o += [valu("v_mul_f32", acc, 1.0 / 576, acc), valu("v_add_f32", acc, 1e-5, acc), valu("v_rsq_f32", acc, acc)]
    for i in range(24): o.append(valu("v_mul_f32", Fx[i], Fx[i], acc))
    for j in range(3):
        for d in range(4):
            o.append(valu("v_cvt_pk_bf16_f32", X[j][d], Fx[8 * j + 2 * d], Fx[8 * j + 2 * d + 1]))
    o += [valu("v_lshrrev_b32", tmp, 4, vrow), salu("s_movk_i32", S_T1, 18432), valu("v_mul_lo_u32", voff, tmp, S_T1),
          valu("v_and_b32", tmp, 15, vrow), valu("v_lshl_add_u32", voff, tmp, 4, voff),
          valu("v_lshrrev_b32", tmp, 2, vi), valu("v_lshl_add_u32", voff, tmp, 10, voff),
          valu("v_and_b32", tmp, 3, vi), valu("v_lshl_add_u32", voff, tmp, 8, voff),
          valu("v_add_u32", tm2, 8192, voff),
          valu("v_add_u32", voff3, 16384, voff), valu("v_mov_b32", tmp, 0x7ff00000),
          valu("v_cndmask_b32", voff3, tmp, voff3, "vcc")]
    o += [bstore(X[0], voff, SRD_XN, 0), bstore(X[1], tm2, SRD_XN, 0), bstore(X[2], voff3, SRD_XN, 0)]
    return o

def acc(a, b):
    i = a * 8 + b
    return V(32 + 4 * i, 4) if i < 56 else A(4 * (i - 56), 4)

def cfg(swap):
    c = Cfg()
    c.NA, c.NB, c.T, c.NS = 8, 8, 8, 2
    c.acc = acc; c.swap = swap
    c.ring = [A(32 + 4 * i, 4) for i in range(4)]
    c.bmode = "lds"
    c.breg = lambda par, b: A(48 + 32 * par + 4 * b, 4)
    c.aread = lambda t, kk, a, hh: (V_AA[a], (t & 1) * 32768 + kk * 16384 + hh * 2048)
    c.bread = lambda t, kk, b: (V_BA[kk], (t & 1) * 32768 + b * 2048)
    def dma_groups(t):
        g = []
        for j in range(8):
            g.append([salu("s_add_u32", "m0", S_WL, (t & 1) * 32768 + j * 4096),
                      salu("s_add_u32", S_SO, S_WOFF, t * 524288 + j * 65536),
                      dma(V_DW[j & 1], SRD_W, S_SO, tag=("dma", t))])
            g.append([salu("s_add_u32", "m0", S_WL, 65536 + (t & 1) * 32768 + j * 4096),
                      salu("s_add_u32", S_SO, S_AOFF, t * 128 + j * 32768),
                      dma(V_DA, SRD_AC, S_SO, tag=("dma", t))])
        return g
    c.dma = dma_groups
    c.delay = 8
    c.dma_span = int(os.environ.get('SPAN', 80))
    if common.DIAG == 2: c.stamp = lambda t: stamp_nw(t + 1)
    return c

def epilogue(swap):
    o = []
    tmp = [V(20 + i) for i in range(8)]
    def getv(blk, slot):
        if blk.k == "v": return blk, []
        t = V(20 + 4 * slot, 4)
        return t, [valu("v_accvgpr_read_b32", t[r], blk[r]) for r in range(4)]
    frags = []
    if not swap:
        for mb in range(8):
            for ds in range(4):
                frags.append((acc(2 * ds, mb), acc(2 * ds + 1, mb), (mb >> 2) * 32768 + ((mb & 3) * 4 + ds) * 1024))
    else:
        for a in range(8):
            for ks in range(4):
                frags.append((acc(a, 2 * ks), acc(a, 2 * ks + 1), (ks >> 1) * 32768 + 16384 + ((ks & 1) * 8 + a) * 1024))
    for b0, b1, off in frags:
        x, c0 = getv(b0, 0); y, c1 = getv(b1, 1)
        o += c0 + c1
        o += [valu("v_cvt_pk_bf16_f32", x[0], x[0], x[1]), valu("v_cvt_pk_bf16_f32", x[1], x[2], x[3]),
              valu("v_cvt_pk_bf16_f32", x[2], y[0], y[1]), valu("v_cvt_pk_bf16_f32", x[3], y[2], y[3])]
        o += [salu("s_add_u32", S_SO, S_OUT, off & ~4095), bstore(x, V_L16, SRD_KV, S_SO, off & 4095)]
    return o

def build(name="kv_kernel"):
    done = name + "_done"
    o = load_ptrs(256, done)
    D = common.DIAG
    if D == 2: o += stamp(0) + stamp_rt(10)
    if D == 1: o += stamp(0) + stamp_rt(6)
    o += lane_consts()
    o += [salu("s_and_b32", S_T0, S_ID, 7), salu("s_lshr_b32", S_T1, S_ID, 3),
          salu("s_lshl_b32", S_NT, S_T0, 2), salu("s_and_b32", S_T0, S_T1, 3), salu("s_add_u32", S_NT, S_NT, S_T0),
          salu("s_lshr_b32", S_MT, S_T1, 2),
          salu("s_and_b32", S_WN, S_W, 1), salu("s_lshr_b32", S_WM, S_W, 1),
          salu("s_lshl_b32", S_WL, S_W, 10)]
    o += [salu("s_cmp_ge_u32", None, S_NT, 16),
          salu("s_cselect_b32", S_T0, P_WUV[0], P_WUK[0]), salu("s_cselect_b32", S_T1, P_WUV[1], P_WUK[1])]
    o += [salu("s_mov_b32", SRD_W[0], S_T0), salu("s_mov_b32", SRD_W[1], S_T1), salu("s_mov_b32", SRD_W[2], 512 * 8192),
          salu("s_mov_b32", SRD_W[3], 0x20000)]
    o += srd(SRD_AC, P_CKV, 0, 2048 * 1024) + srd(SRD_X, P_X, 0, 2048 * 1152)
    o += srd(SRD_XN, P_WS, WS_XN, SZ_XN) + srd(SRD_KV, P_WS, WS_KV, SZ_KV)
    o += [salu("s_and_b32", S_T0, S_NT, 15), salu("s_lshl_b32", S_WOFF, S_T0, 9),
          salu("s_lshl_b32", S_AOFF, S_MT, 18)]
    o += [salu("s_lshl_b32", S_T0, S_T0, 1), salu("s_add_u32", S_T0, S_T0, S_WN), salu("s_lshl_b32", S_OUT, S_T0, 20),
          salu("s_lshl_b32", S_T0, S_MT, 1), salu("s_add_u32", S_T0, S_T0, S_WM), salu("s_lshl_b32", S_T0, S_T0, 16),
          salu("s_add_u32", S_OUT, S_OUT, S_T0)]
    t = lambda i: V(TMP + i)
    o += [valu("v_lshrrev_b32", t(0), 5, V_L), salu("s_lshl_b32", S_T0, S_W, 1), valu("v_add_u32", t(0), S_T0, t(0)),
          valu("v_and_b32", t(1), 3, t(0)),
          valu("v_bfe_u32", t(2), V_L, 1, 4), valu("v_xor_b32", t(2), t(2), t(1)),
          valu("v_lshlrev_b32", t(0), 13, t(0)), valu("v_and_b32", t(3), 1, V_L), valu("v_lshl_add_u32", t(0), t(3), 4, t(0)),
          valu("v_lshl_add_u32", V_DW[0], t(2), 5, t(0)),
          valu("v_xor_b32", t(2), 4, t(2)), valu("v_lshl_add_u32", V_DW[1], t(2), 5, t(0))]
    o += [valu("v_lshrrev_b32", t(0), 3, V_L), salu("s_lshl_b32", S_T0, S_W, 3), valu("v_add_u32", t(0), S_T0, t(0)),
          valu("v_bfe_u32", t(1), t(0), 1, 3), valu("v_and_b32", t(2), 7, V_L), valu("v_xor_b32", t(1), t(1), t(2)),
          valu("v_lshlrev_b32", t(0), 10, t(0)), valu("v_lshl_add_u32", V_DA, t(1), 4, t(0))]
    c0, c1 = cfg(False), cfg(True)
    for tt in range(2):
        for grp in c0.dma(tt): o += grp[:-1] + [nop(0)] + grp[-1:]
    if D == 1: o += stamp(1)
    o += layernorm()
    if D == 1: o += stamp(2)
    o += [valu("v_lshrrev_b32", t(0), 2, V_C), valu("v_and_b32", t(1), 1, V_G), valu("v_lshl_or_b32", t(1), t(1), 2, t(0)),
          valu("v_lshl_add_u32", t(0), V_G, 3, t(0)), valu("v_lshlrev_b32", t(0), 9, t(0)),
          valu("v_and_b32", t(2), 3, V_C), valu("v_lshl_add_u32", t(0), t(2), 3, t(0)),
          salu("s_lshl_b32", S_T0, S_WN, 8), valu("v_add_u32", t(0), S_T0, t(0))]
    for x in range(8):
        o += [valu("v_xor_b32", t(2), x, t(1)), valu("v_lshl_add_u32", V_AA[x], t(2), 5, t(0))]
    o += [salu("s_lshl_b32", S_T0, S_WM, 14), salu("s_add_u32", S_T0, S_T0, 65536),
          valu("v_lshlrev_b32", t(0), 7, V_C), valu("v_add_u32", t(0), S_T0, t(0)), valu("v_lshrrev_b32", t(1), 1, V_C)]
    for kk in range(2):
        o += [valu("v_or_b32", t(2), 4 * kk, V_G), valu("v_xor_b32", t(2), t(2), t(1)), valu("v_lshl_add_u32", V_BA[kk], t(2), 4, t(0))]
    o += [salu("s_cmp_ge_u32", None, S_NT, 16), branch("s_cbranch_scc1", name + "_v")]
    pro, lg, vm = insert_waits(o)
    pro = insert_nops(pro)
    parts = [pro]
    for swap in (False, True):
        body = gemm_main(cfg(swap))
        if D == 1: body = body[:2] + stamp(3) + body[2:] + stamp(4)
        if D == 2: body = body[:2] + stamp(1) + body[2:] + stamp(9)
        body += epilogue(swap)
        if D == 1: body += [waitcnt(vm=0)] + stamp(5) + stamp_rt(7) + stamp_out(8)
        if D == 2: body += [waitcnt(vm=0)] + stamp_rt(11) + stamp_out(12)
        body.append(raw("s_endpgm", "other"))
        b, _, _ = insert_waits(body, lg, vm)
        b = insert_nops(b, pro[-12:])
        parts.append(([label(name + "_v")] if swap else []) + b)
    tail = [label(done), raw("s_endpgm", "other")]
    return parts[0] + parts[1] + parts[2] + tail

if __name__ == "__main__":
    import sys
    common.DIAG = int(sys.argv[1]) if len(sys.argv) > 1 else 0
    ins = build()
    s = "; @launch kernel=kv_kernel grid=(256,1,1) block=(256,1,1) lds=131072\n" + PRELUDE + kernel_text("kv_kernel", ins)
    s += '.section .rodata,"a"\n' + descriptor("kv_kernel")
    open("kv.s", "w").write(s)
    print(len(ins), "instructions", len(s), "bytes")
```

```python
import sys, common
from asmgen import *
import k_kv, k_gu, k_attn, k_fin
NAME = "parallel_sum__compressed_kv_cla__geglu_ffn__prompt"
def main(out):
    hdr = open("cdna_kernels/%s.s.ref" % NAME).read().split("; Override launch geometry")[0]
    ks = [("kv_kernel", k_kv.build(), 256, 131072, 512, 256), ("gu_kernel", k_gu.build(), 256, 122880, 512, 256),
          ("attn_kernel", k_attn.build(), 256, 163840, 512, 256), ("fin_kernel", k_fin.build(), 256, 81920, 512, 256),
          ("red_kernel", k_fin.build_red(), 576, 0, 64, 64)]
    s = hdr
    for n, ins, g, lds, nv, ac in ks:
        s += "; @launch kernel=%s grid=(%d,1,1) block=(256,1,1) lds=%d\n" % (n, g, lds)
    s += PRELUDE
    for n, ins, g, lds, nv, ac in ks: s += kernel_text(n, ins)
    s += '.section .rodata,"a"\n'
    for n, ins, g, lds, nv, ac in ks: s += descriptor(n, nv, ac, nsgpr=102 if nv == 512 else 72)
    open(out, "w").write(s)
    print(len(s), "bytes")
if __name__ == "__main__":
    main(sys.argv[1] if len(sys.argv) > 1 else "cdna_kernels/%s.s" % NAME)
```

```python
def R(kind, base, n=1):
    return [(kind, base + i) for i in range(n)]

class Reg:
    __slots__ = ("k", "b", "n")
    def __init__(self, k, b, n=1):
        self.k, self.b, self.n = k, b, n
    def __str__(self):
        if self.n == 1:
            return "%s%d" % (self.k, self.b)
        return "%s[%d:%d]" % (self.k, self.b, self.b + self.n - 1)
    def regs(self):
        return [(self.k, self.b + i) for i in range(self.n)]
    def sub(self, off, n=1):
        assert off + n <= self.n
        return Reg(self.k, self.b + off, n)
    def __getitem__(self, i):
        return self.sub(i, 1)

def V(b, n=1): return Reg("v", b, n)
def A(b, n=1): return Reg("a", b, n)
def S(b, n=1): return Reg("s", b, n)

def _regs(x):
    if isinstance(x, Reg):
        return x.regs()
    if isinstance(x, str) and x in ("vcc", "m0", "exec", "scc"):
        return [(x, 0)]
    return []

class Inst:
    __slots__ = ("text", "kind", "r", "w", "tag", "c", "cnt", "deps")
    def __init__(self, text, kind, r=(), w=(), tag=None, c=()):
        self.text, self.kind = text, kind
        self.r, self.w = set(r), set(w)
        self.tag = tag
        self.c = set(c)
        self.cnt = None
        self.deps = None
    def __repr__(self):
        return self.text

TRANS = ("v_exp_f32", "v_rcp_f32", "v_rsq_f32", "v_log_f32", "v_sqrt_f32")

def fmt(x):
    if isinstance(x, float):
        import struct
        if x in (0.5, 1.0, 2.0, 4.0, -0.5, -1.0, -2.0, -4.0):
            return repr(x)
        return "0x%08x" % struct.unpack("<I", struct.pack("<f", x))[0]
    if isinstance(x, int):
        if -16 <= x <= 64:
            return str(x)
        return "0x%x" % (x & 0xffffffff)
    return str(x)

def mfma(d, a, b, c):
    cr = _regs(c)
    return Inst("mf %s, %s, %s, %s" % (d, a, b, fmt(c)), "mfma", _regs(a) + _regs(b) + cr, _regs(d), c=cr)

def valu(op, dst, *src, extra_r=(), extra_w=(), suffix=""):
    r = list(extra_r); w = list(extra_w)
    for d in (dst if isinstance(dst, (list, tuple)) else [dst]):
        w += _regs(d)
    for s in src:
        if isinstance(s, str) and s.startswith("-") and False:
            pass
        r += _regs(s)
    if op in ("v_fmac_f32",) or op.startswith("v_permlane"):
        r += _regs(dst)
    if op.startswith("v_permlane"):
        w += _regs(src[0])
    dtxt = ", ".join(str(d) for d in dst) if isinstance(dst, (list, tuple)) else str(dst)
    text = "%s %s, %s%s" % (op, dtxt, ", ".join(fmt(s) for s in src), suffix)
    kind = "trans" if op in TRANS else "valu"
    return Inst(text, kind, r, w)

class Neg:
    def __init__(self, x): self.x = x
    def __str__(self): return "-%s" % self.x
_old_regs = _regs
def _regs(x):
    if isinstance(x, Neg):
        return _old_regs(x.x)
    return _old_regs(x)

def salu(op, dst, *src, scc_r=False):
    r = []; w = []
    if dst is not None:
        w += _regs(dst)
    for s in src:
        r += _regs(s)
    if op.startswith("s_cmp") or op in ("s_add_u32", "s_sub_u32", "s_addc_u32", "s_subb_u32", "s_and_b32", "s_or_b32",
                                       "s_xor_b32", "s_lshl_b32", "s_lshr_b32", "s_add_i32", "s_sub_i32", "s_min_u32", "s_max_u32",
                                       "s_and_b64", "s_or_b64", "s_ashr_i32", "s_min_i32", "s_max_i32"):
        w.append(("scc", 0))
    if op in ("s_addc_u32", "s_subb_u32", "s_cselect_b32", "s_cselect_b64", "s_cmov_b32"):
        r.append(("scc", 0))
    parts = ([str(dst)] if dst is not None else []) + [fmt(s) for s in src]
    return Inst("%s %s" % (op, ", ".join(parts)), "salu", r, w)

def ds_read(dst, addr, off=0, tr=False):
    op = "ds_read_b64_tr_b16" if tr else {1: "ds_read_b32", 2: "ds_read_b64", 4: "ds_read_b128"}[dst.n]
    assert 0 <= off < 65536, off
    return Inst("%s %s, %s%s" % (op, dst, addr, " offset:%d" % off if off else ""), "ds_r", _regs(addr), _regs(dst))

def ds_write(addr, src, off=0):
    op = {1: "ds_write_b32", 2: "ds_write_b64", 4: "ds_write_b128"}[src.n]
    assert 0 <= off < 65536, off
    return Inst("%s %s, %s%s" % (op, addr, src, " offset:%d" % off if off else ""), "ds_w", _regs(addr) + _regs(src), [])

def _w(n): return {1: "dword", 2: "dwordx2", 4: "dwordx4"}[n]
def _so(soff): return fmt(soff)

def dma(voff, srd, soff, imm=0, tag=None, flags=""):
    assert 0 <= imm < 4096
    return Inst("buffer_load_dwordx4 %s, %s, %s offen%s lds%s" % (voff, srd, _so(soff), " offset:%d" % imm if imm else "", flags),
                "dma", _regs(voff) + _regs(srd) + _regs(soff) + [("m0", 0)], [], tag=tag)

def bload(dst, voff, srd, soff, imm=0, tag=None, flags=""):
    assert 0 <= imm < 4096
    return Inst("buffer_load_%s %s, %s, %s, %s offen%s%s" % (_w(dst.n), dst, voff, srd, _so(soff), " offset:%d" % imm if imm else "", flags),
                "vm_ld", _regs(voff) + _regs(srd) + _regs(soff), _regs(dst), tag=tag)

def bstore(src, voff, srd, soff, imm=0, tag=None, flags=""):
    assert 0 <= imm < 4096
    return Inst("buffer_store_%s %s, %s, %s, %s offen%s%s" % (_w(src.n), src, voff, srd, _so(soff), " offset:%d" % imm if imm else "", flags),
                "vm_st", _regs(voff) + _regs(srd) + _regs(soff) + _regs(src), [], tag=tag)

def barrier(): return Inst("s_barrier", "barrier")
def nop(n=0): return Inst("s_nop %d" % n, "nop")
def label(name): return Inst("%s:" % name, "label")
def branch(op, target):
    r = []
    if "scc" in op: r = [("scc", 0)]
    if "vcc" in op: r = [("vcc", 0)]
    if "exec" in op: r = [("exec", 0)]
    return Inst("%s %s" % (op, target), "branch", r)
def raw(text, kind="salu", r=(), w=()):
    rr = []; ww = []
    for x in r: rr += _regs(x)
    for x in w: ww += _regs(x)
    return Inst(text, kind, rr, ww)
def waitcnt(vm=None, lgkm=None):
    p = []
    if vm is not None: p.append("vmcnt(%d)" % vm)
    if lgkm is not None: p.append("lgkmcnt(%d)" % lgkm)
    i = Inst("s_waitcnt " + " ".join(p), "wait")
    i.cnt = (vm, lgkm)
    return i
def wait_tag(tag):
    return Inst("; wait_tag %s" % (tag,), "wait_tag", tag=tag)
def wait_ds():
    return Inst("; wait_ds", "wait_ds")
def smem_load(dst, base, off):
    return Inst("s_load_%s %s, %s, 0x%x" % ({1: "dword", 2: "dwordx2", 4: "dwordx4", 8: "dwordx8", 16: "dwordx16"}[dst.n], dst, base, off),
                "smem", _regs(base), _regs(dst))

VM = ("dma", "vm_ld", "vm_st")
DS = ("ds_r", "ds_w")

MERGE_AGE = 0
MERGE_MAX = 3
def insert_waits(ins, lg=None, vm=None):
    out = []
    issue_pos = {}
    lg = list(lg or []); vm = list(vm or [])
    def need(queue, idx):
        return len(queue) - 1 - idx
    def do_wait(vmc, lgc, hoist=False):
        nonlocal lg, vm
        if vmc is not None and vmc >= len(vm): vmc = None
        if lgc is not None and lgc >= len(lg): lgc = None
        if vmc is None and lgc is None: return
        if vmc is not None:
            vmc = min(vmc, 63); vm = vm[len(vm) - vmc:] if vmc else []
        if lgc is not None:
            lgc = min(lgc, 15); lg = lg[len(lg) - lgc:] if lgc else []
        if hoist:
            pos = len(out) - 1
            nl = nv = 0
            while pos >= 0 and out[pos].kind in ("ds_r", "ds_w", "dma", "vm_ld", "vm_st", "valu", "trans", "salu") and len(out) - pos <= 6:
                if out[pos].kind in DS: nl += 1
                if out[pos].kind in VM: nv += 1
                pos -= 1
            if pos >= 0 and out[pos].kind == "mfma" and (lgc is None or lgc >= nl) and (vmc is None or vmc >= nv):
                out.insert(pos + 1, waitcnt(None if vmc is None else vmc - nv, None if lgc is None else lgc - nl))
                return
        out.append(waitcnt(vmc, lgc))
    for i in ins:
        if i.kind == "wait_tag":
            idx = max([j for j, o in enumerate(vm) if o.tag == i.tag], default=None)
            if idx is not None: do_wait(need(vm, idx), None)
            continue
        if i.kind == "wait_ds":
            do_wait(None, 0)
            continue
        if i.kind == "wait":
            v, l = i.cnt
            if v is not None and v < len(vm): vm = vm[len(vm) - v:] if v else []
            if l is not None and l < len(lg): lg = lg[len(lg) - l:] if l else []
            out.append(i); continue
        if i.kind == "smem":
            out.append(i); continue
        touch = i.r | i.w
        vmc = lgc = None
        ext = 0
        if touch:
            for j in range(len(vm) - 1, -1, -1):
                if vm[j].tag != "touch" and vm[j].w & touch:
                    vmc = need(vm, j); break
            for j in range(len(lg) - 1, -1, -1):
                if lg[j].w & touch:
                    if MERGE_AGE and i.kind == "mfma":
                        while j + 1 < len(lg) and len(out) - issue_pos.get(id(lg[j + 1]), -10 ** 9) >= MERGE_AGE and ext < MERGE_MAX:
                            j += 1; ext += 1
                    lgc = need(lg, j); break
        do_wait(vmc, lgc, hoist=(i.kind == "mfma"))
        if i.kind in VM:
            if len(vm) >= 63: do_wait(62, None)
            vm.append(i)
        if i.kind in DS:
            if len(lg) >= 15: do_wait(None, 14)
            lg.append(i); issue_pos[id(i)] = len(out)
        out.append(i)
    return out, lg, vm

def _isv(reg): return reg[0] in ("v", "a")

def hazard_need(p, c):
    n = 0
    pv = p.kind in ("valu", "trans"); cv = c.kind in ("valu", "trans")
    if pv:
        wv = {x for x in p.w if _isv(x)}
        ws = {x for x in p.w if not _isv(x)}
        if c.kind == "mfma" and wv & c.r: n = max(n, 2)
        if p.kind == "trans" and c.kind == "valu" and wv & (c.r | c.w): n = max(n, 1)
        if cv and wv & c.r:
            if c.text.startswith(("v_readfirstlane", "v_readlane")): n = max(n, 1)
            if c.text.startswith("v_permlane") or "row_" in c.text or "quad_perm" in c.text: n = max(n, 2)
        if ws:
            if cv and ws & c.r: n = max(n, 2)
            if c.kind in VM and ws & c.r: n = max(n, 5)
            if ("exec", 0) in ws and c.kind == "mfma": n = max(n, 4)
            if c.kind == "salu" and ws & c.r: n = max(n, 4)
            if c.kind == "branch" and ws & c.r: n = max(n, 5)
    if p.kind == "mfma":
        if (cv or c.kind in VM or c.kind in DS) and p.w & (c.r | c.w): n = max(n, 8)
        if c.kind == "mfma":
            if p.w & (c.r - c.c): n = max(n, 8)
            if p.w & c.c and p.w != c.c: n = max(n, 6)
            if p.w & c.w and p.w != c.c: n = max(n, 8)
        if cv and p.c & c.w: n = max(n, 3)
    if p.kind == "salu" and ("m0", 0) in p.w and c.kind == "dma": n = max(n, 1)
    if p.kind == "vm_st" and cv:
        data = {x for x in p.r if _isv(x)}
        if len(data) >= 4 and data & c.w: n = max(n, 2)
    if p.kind == "vm_st" and c.kind in ("vm_ld", "ds_r"):
        data = {x for x in p.r if _isv(x)}
        if len(data) >= 4 and data & c.w: n = max(n, 1)
    return n

def states(i):
    if i.kind == "nop":
        return int(i.text.split()[1]) + 1
    if i.kind in ("label",) or i.text.startswith(";"):
        return 0
    return 1

def insert_nops(ins, hist=None):
    out = list(hist or [])
    base = len(out)
    for c in ins:
        need = 0; dist = 0
        for p in reversed(out[-24:]):
            h = hazard_need(p, c)
            if h > dist: need = max(need, h - dist)
            dist += states(p)
            if dist >= 12: break
        while need > 0:
            k = min(need, 8)
            out.append(nop(k - 1)); need -= k
        out.append(c)
    return out[base:]

def finalize(ins, lg=None, vm=None, hist=None):
    a, lg, vm = insert_waits(ins, lg, vm)
    return insert_nops(a, hist), lg, vm

def group(*insts):
    sal = [i for i in insts if i.kind == "salu"]
    for i in insts:
        if i.kind != "salu": i.deps = sal
    return list(insts)

def check_deps(ins):
    last = {}
    for i in ins:
        if i.deps:
            for d in i.deps:
                for reg in d.w:
                    if reg[0] == "scc" or reg not in i.r: continue
                    assert last.get(reg) is d, ("set-up overwritten", i.text, d.text, last.get(reg) and last[reg].text)
        for reg in i.w: last[reg] = i

def check_scc(ins):
    last = None
    for i in ins:
        if i.kind == "label": last = None
        if i.text.startswith(("s_cselect", "s_cbranch_scc", "s_cmov")):
            assert last is None or last.text.startswith("s_cmp"), ("SCC clobber", last.text, i.text)
        if i.text.startswith("s_addc"):
            assert last is not None and last.text.startswith("s_add_u32"), ("carry clobber", i.text)
        if ("scc", 0) in i.w: last = i

def text(ins):
    check_scc(ins)
    check_deps(ins)
    o = []
    for i in ins:
        if i.kind == "label": o.append(i.text)
        else: o.append(" " + i.text)
    return "\n".join(o) + "\n"

def interleave(main, fill):
    out = []
    def emit(lst):
        out.extend(lst)
    emit(fill.get(-1, []))
    for g, m in enumerate(main):
        out.append(m)
        emit(fill.get(g, []))
    for g in sorted(k for k in fill if k >= len(main)):
        emit(fill[g])
    return out

PRELUDE = """.amdgcn_target "amdgcn-amd-amdhsa--gfx950"
.text
.macro mf d, a, b, c
v_mfma_f32_16x16x32_bf16 \\d, \\a, \\b, \\c
.endm
"""

def kernel_text(name, ins):
    return ".globl %s\n.p2align 8\n.type %s,@function\n%s:\n%s" % (name, name, name, text(ins))

def descriptor(name, nvgpr=512, accum=256, nsgpr=96):
    return (".p2align 6\n.amdhsa_kernel %s\n .amdhsa_next_free_vgpr %d\n .amdhsa_next_free_sgpr %d\n .amdhsa_accum_offset %d\n"
            " .amdhsa_group_segment_fixed_size 0\n .amdhsa_kernarg_size 104\n .amdhsa_user_sgpr_count 2\n"
            " .amdhsa_user_sgpr_kernarg_segment_ptr 1\n .amdhsa_system_sgpr_workgroup_id_x 1\n"
            " .amdhsa_float_denorm_mode_32 3\n.end_amdhsa_kernel\n" % (name, nvgpr, nsgpr, accum))


class Gaps:
    def __init__(self, n, cap=2, sal_ok=None):
        self.n = n; self.cap = cap; self.sal_ok = sal_ok or (lambda g: True)
        self.vec = {}; self.sal = {}; self.items = {}
    def _add(self, g, inst, scalar):
        lst = self.items.setdefault(g, [])
        if scalar:
            k = 0
            while k < len(lst) and lst[k].kind == "salu": k += 1
            lst.insert(k, inst)
        else:
            lst.append(inst)
    def block(self, g, insts):
        assert self.vec.get(g, 0) == 0, ("gap busy", g)
        self.vec[g] = self.cap; self.sal[g] = 9
        self.items.setdefault(g, []).extend(insts)
    def put(self, inst, earliest, latest=None):
        cost = 2 if inst.kind == "trans" else 1
        g = earliest
        if inst.kind == "salu":
            while g < self.n and (self.sal.get(g, 0) >= 1 or not self.sal_ok(g) or any(x.kind != "salu" and (x.r & inst.w) for x in self.items.get(g, []))): g += 1
            if g < self.n: self.sal[g] = self.sal.get(g, 0) + 1
            self._add(g, inst, True)
        else:
            while g < self.n and self.vec.get(g, 0) + cost > self.cap: g += 1
            if g < self.n: self.vec[g] = self.vec.get(g, 0) + cost
            self._add(g, inst, False)
        assert latest is None or g <= latest, ("late", inst.text, g, latest)
        return g
    def put_force(self, inst, earliest, latest):
        cost = 2 if inst.kind == "trans" else 1
        g = earliest
        while g < latest and self.vec.get(g, 0) + cost > self.cap: g += 1
        g = min(max(g, earliest), max(latest, earliest))
        self.vec[g] = self.vec.get(g, 0) + cost
        self._add(g, inst, False)
        return g
```

```python
from asmgen import *

class Cfg:
    KK = 2
    delay = 6
    npre = None
    nbpre = None
    stamp = None
    swap = False

def gemm_main(c, extra=None):
    NA, NB, T, NS, KK = c.NA, c.NB, c.T, c.NS, c.KK
    RING = len(c.ring)
    per_kk = NA * NB
    per_t = KK * per_kk
    npre = NS if c.npre is None else c.npre
    main = []
    for t in range(T):
        for kk in range(KK):
            s = t * KK + kk
            for a in range(NA):
                af = c.ring[(s * NA + a) % RING]
                for b in range(NB):
                    bf = c.breg(s & 1, b) if c.bmode == "lds" else c.breg(t, kk, b)
                    acc = c.acc(a, b)
                    cin = 0 if s == 0 else acc
                    main.append(mfma(acc, bf, af, cin) if c.swap else mfma(acc, af, bf, cin))
    n = len(main)
    G = Gaps(n)
    px = {t: (KK * NA * t - RING) * NB - 1 + c.delay for t in range(1, T)}
    for t in range(1, T):
        st = c.stamp(t) if c.stamp else []
        G.block(px[t], st + [wait_tag(("dma", t)), wait_ds(), barrier()])
    pre = [wait_tag(("dma", 0)), barrier()]
    def areads(i):
        t, r = divmod(i, KK * NA); kk, a = divmod(r, NA)
        out = []
        for hh in range(2):
            addr, imm = c.aread(t, kk, a, hh)
            out.append(ds_read(c.ring[i % RING].sub(2 * hh, 2), addr, imm, tr=True))
        return out
    if c.bmode == "lds":
        for b in range(NB):
            addr, imm = c.bread(0, 0, b)
            pre.append(ds_read(c.breg(0, b), addr, imm))
    for i in range(min(RING, KK * NA * T)):
        pre += areads(i)
    for i in range(RING, KK * NA * T):
        t = i // (KK * NA)
        earliest = (i - RING + 1) * NB - 1
        latest = i * NB - 3
        if t >= 1: earliest = max(earliest, px[t] + 1)
        if t + 1 < T: latest = min(latest, px[t + 1] - 3)
        for ins in areads(i):
            G.put(ins, earliest, latest=latest)
    if c.bmode == "lds":
        for s in range(1, T * KK):
            t, kk = divmod(s, KK)
            earliest = (s - 1) * per_kk + 1
            if kk == 0: earliest = max(earliest, px[t] + 1)
            for b in range(NB):
                addr, imm = c.bread(t, kk, b)
                latest = s * per_kk + b - 3
                if t + 1 < T: latest = min(latest, px[t + 1] - 3)
                G.put(ds_read(c.breg(s & 1, b), addr, imm), earliest + (b if kk == 0 else 2 * b), latest=latest)
    def place_groups(groups, g, span, latest=None):
        step = max(2, span // max(len(groups), 1))
        for grp in groups:
            g0 = g
            for ins in grp:
                if ins.kind == "salu": g = G.put(ins, g)
                else: g = G.put(ins, g + 1)
            g = max(g + 1, g0 + step)
        assert latest is None or g <= latest + step + 1, ("dma late", g, latest)
        return g
    span = getattr(c, "dma_span", per_t - 12)
    g_free = 0
    if npre < NS:
        groups = []
        for tt in range(npre, min(NS, T)): groups += c.dma(tt)
        g_free = place_groups(groups, 0, min(span * (NS - npre), getattr(c, "first_span", px.get(1, n))))
    for t in range(1, T):
        tt = t + NS - 1
        if tt >= T: continue
        g_free = place_groups(c.dma(tt), max(px[t] + 1, g_free), span)
    if c.bmode == "direct":
        nbpre = c.BD if c.nbpre is None else c.nbpre
        hook = getattr(c, "bhook", None)
        for t in range(nbpre, T):
            g = max(0, (t - c.BD + 1) * per_t)
            if hook: g = hook(G, t, g)
            step = max(1, (per_t - 8) // (KK * NB + 1))
            if t < c.BD: step = 2
            for kk in range(KK):
                for b in range(NB):
                    for ins in c.bload(t, kk, b):
                        g = G.put(ins, g)
                    assert g < (t * KK + kk) * per_kk + b - 8, ("b late", t, kk, b, g)
                    g += step - 1
    if extra:
        extra(G, main, px)
    return pre, interleave(main, G.items)
```

```python
import os, sys
import asmgen
from asmgen import *
from gemm2 import *

DIAG = int(os.environ.get("DIAG", 0))
SC1 = " sc1"
OPT_TOUCH = os.environ.get("TOUCH", "oga")
SC1ST = os.environ.get("STFLAG", " sc1").replace("_", " ")

P_X, P_CKV, P_WQ, P_WUK, P_WUV, P_WO, P_BX, P_WG = [S(4 + 2 * i, 2) for i in range(8)]
P_WU, P_WD, P_OUT, P_DBG = [S(20 + 2 * i, 2) for i in range(4)]
P_WS = S(28, 2)
S_ID, S_W = S(2), S(3)
WS_XN, SZ_XN = 0, 128 * 18 * 1024
WS_KV, SZ_KV = 4 << 20, 32 << 20
WS_HC, SZ_HC = 40 << 20, 128 * 272 * 1024
WS_PART, SZ_PART = 80 << 20, 8 * 64 * 36 * 1024
WS_FLG, SZ_FLG = 120 << 20, 2 << 20
FG_LN, FG_KV, FG_H, FG_C, FG_P, FG_TAG = 0, 2048, 4096, 12288, 20480, 1 << 20
OOB = 0x7ff00000

S_T0, S_T1 = S(30), S(31)
SRD_A, SRD_B, SRD_C, SRD_D, SRD_E, SRD_F, SRD_T = [S(32 + 4 * i, 4) for i in range(7)]
S_SO, S_SB, S_ST, S_S2 = S(60), S(61), S(62), S(63)
S_X, S_Q, S_J, S_H = S(64), S(65), S(66), S(67)
S_ML, S_MS = S(68), S(69)
SP = lambda i: S(70 + i)
S_SPIN = S(95)

V_L, V_G, V_C, V_L16, V_FOFF, V_INC = V(1), V(2), V(3), V(4), V(5), V(6)
A_DUMMY = A(170)

_stamp_n = [0]
STAMP_NAMES = []
def stamp(name, wait=True):
    if not DIAG: return []
    k = _stamp_n[0]; _stamp_n[0] += 1; STAMP_NAMES.append(name)
    return [raw("s_memtime s[96:97]", "other"), waitcnt(lgkm=0), raw("v_writelane_b32 v0, s96, %d" % k, "valu", w=[V(0)])]
def stamp_rt(name):
    if not DIAG: return []
    k = _stamp_n[0]; _stamp_n[0] += 1; STAMP_NAMES.append(name)
    return [raw("s_memrealtime s[96:97]", "other"), waitcnt(lgkm=0), raw("v_writelane_b32 v0, s96, %d" % k, "valu", w=[V(0)])]
def stamp_out():
    if not DIAG: return []
    o = srd(SRD_T, P_WS, 128 << 20, 1 << 20)
    o += [waitcnt(vm=0), salu("s_lshl_b32", S_T0, S_ID, 2), salu("s_add_u32", S_T0, S_T0, S_W), salu("s_lshl_b32", S_T0, S_T0, 8),
          valu("v_lshlrev_b32", V(1), 2, V_L), bstore(V(0), V(1), SRD_T, S_T0), waitcnt(vm=0)]
    return o

def srd(dst, ptr, off, size):
    if isinstance(off, int) and off == 0:
        o = [salu("s_mov_b32", dst[0], ptr[0]), salu("s_mov_b32", dst[1], ptr[1])]
    else:
        o = [salu("s_add_u32", dst[0], ptr[0], off), salu("s_addc_u32", dst[1], ptr[1], 0)]
    return o + [salu("s_mov_b32", dst[2], size), salu("s_mov_b32", dst[3], 0x20000)]

def lin(groups):
    r = []
    for g in groups:
        if len(g) > 1 and g[-1].kind == "dma": r += g[:-1] + [nop(0)] + g[-1:]
        else: r += g
    return r


def flag_store(soff, imm=0):
    return bstore(V_INC, V_FOFF, SRD_F, soff, imm, tag="sig", flags=SC1)

SLOW = []
def flag_check(name, load, dst):
    def test():
        return [valu("v_cmp_eq_u32", "vcc", V_INC, dst), raw("s_cmp_eq_u64 vcc, -1", "salu", r=["vcc"], w=["scc"])]
    fast = test() + [branch("s_cbranch_scc0", name + "_spin"), label(name + "_ok")]
    slow = [label(name + "_spin"), salu("s_mov_b32", S_SPIN, 0), label(name + "_again"), raw("s_sleep 2", "other")]
    slow += load() + [waitcnt(vm=0)] + test() + [branch("s_cbranch_scc1", name + "_leave"),
            salu("s_add_u32", S_SPIN, S_SPIN, 1), salu("s_cmp_lt_u32", None, S_SPIN, 1 << 18), branch("s_cbranch_scc1", name + "_again"),
            label(name + "_leave"), nop(4), branch("s_branch", name + "_ok")]
    sl, _, _ = finalize(slow)
    SLOW.extend(sl)
    return fast

def poll(dst, addr, soff, imm=0):
    return bload(dst, addr, SRD_F, soff, imm, tag="poll", flags=SC1)

def group_poll(dst, addr, sreg, nwords, base, idx_code):
    return [valu("v_and_b32", addr, nwords - 1, V_L), valu("v_lshlrev_b32", addr, 2, addr)] + idx_code + \
           [salu("s_lshl_b32", sreg, sreg, 7), salu("s_add_u32", sreg, sreg, base), poll(dst, addr, sreg)]

def put_seq(G, insts, g, step=1):
    for ins in insts: g = G.put(ins, g) + (step - 1)
    return g
def put_check(G, g, chk):
    G.items.setdefault(g, []).extend(chk)
    G.vec[g] = G.cap; G.sal[g] = 9
    return g + 1

KV_DW = [V(8), V(9)]; KV_DA = V(10); KV_AA = [V(11 + i) for i in range(8)]; KV_BA = V(19)
GU_DW = [V(20 + j) for j in range(10)]
V_LNA = [V(30), V(31)]
A_LN = [A(112 + 4 * j, 4) for j in range(3)]
S_WL, S_WOFF, S_AOFF, S_KVOUT, S_WM, S_WN, S_ISV, S_HP = [SP(i) for i in range(8)]
S_GWL, S_GPAR, S_GWB = SP(8), SP(9), SP(10)
TMP = 32
GSTG = 40960

def blk(f, hb):
    return V(32 + 8 * f + 4 * hb, 4) if f < 28 else A(8 * (f - 28) + 4 * hb, 4)
def kv_acc(swap):
    if not swap: return lambda a, b: blk(b * 4 + (a >> 1), a & 1)
    return lambda a, b: blk((b >> 1) * 8 + a, b & 1)

def layernorm():
    o = []
    t = lambda i, n=1: V(TMP + i, n)
    vi, vrow, voff, voff3 = t(0), t(1), t(2), t(3)
    X = [t(8 + 4 * j, 4) for j in range(3)]
    Fx = [t(24 + i) for i in range(24)]
    acc, tmp, tm2 = t(48), t(49), t(50)
    o += [valu("v_and_b32", vi, 31, V_L), valu("v_lshrrev_b32", vrow, 5, V_L),
          salu("s_lshl_b32", S_T0, S_ID, 3), salu("s_lshl_b32", S_T1, S_W, 1), salu("s_add_u32", S_T0, S_T0, S_T1),
          valu("v_add_u32", vrow, S_T0, vrow),
          salu("s_movk_i32", S_T1, 1152), valu("v_mul_lo_u32", voff, vrow, S_T1),
          valu("v_lshl_add_u32", voff, vi, 4, voff),
          valu("v_cmp_gt_u32", "vcc", 8, vi),
          valu("v_add_u32", voff3, 1024, voff), valu("v_mov_b32", tmp, OOB),
          valu("v_cndmask_b32", voff3, tmp, voff3, "vcc")]
    o += [bload(X[0], voff, SRD_D, 0), bload(X[1], voff, SRD_D, 0, 512), bload(X[2], voff3, SRD_D, 0)]
    nload = len(o)
    o.append(valu("v_cmp_gt_u32", "vcc", 8, vi))
    for j in range(3):
        for d in range(4):
            o += [valu("v_lshlrev_b32", Fx[8 * j + 2 * d], 16, X[j][d]), valu("v_and_b32", Fx[8 * j + 2 * d + 1], 0xffff0000, X[j][d])]
    def rowsum(x):
        r = [valu("v_add_f32_dpp", x, x, x, suffix=" row_ror:%d row_mask:0xf bank_mask:0xf" % sh) for sh in (8, 4, 2, 1)]
        return r + [valu("v_mov_b32", tm2, x), valu("v_permlane16_swap_b32", x, tm2), valu("v_add_f32", x, x, tm2)]
    o.append(valu("v_add_f32", acc, Fx[0], Fx[1]))
    for i in range(2, 24): o.append(valu("v_add_f32", acc, acc, Fx[i]))
    o += rowsum(acc)
    o.append(valu("v_mul_f32", acc, 1.0 / 576, acc))
    for i in range(24): o.append(valu("v_sub_f32", Fx[i], Fx[i], acc))
    for i in range(16, 24): o.append(valu("v_cndmask_b32", Fx[i], 0, Fx[i], "vcc"))
    o.append(valu("v_mul_f32", acc, Fx[0], Fx[0]))
    for i in range(1, 24): o.append(valu("v_fmac_f32", acc, Fx[i], Fx[i]))
    o += rowsum(acc)
    o += [valu("v_mul_f32", acc, 1.0 / 576, acc), valu("v_add_f32", acc, 1e-5, acc), valu("v_rsq_f32", acc, acc)]
    for i in range(24): o.append(valu("v_mul_f32", Fx[i], Fx[i], acc))
    for j in range(3):
        for d in range(4):
            o.append(valu("v_cvt_pk_bf16_f32", X[j][d], Fx[8 * j + 2 * d], Fx[8 * j + 2 * d + 1]))
    va, vb = V_LNA
    o += [valu("v_lshrrev_b32", tmp, 4, vrow), salu("s_movk_i32", S_T1, 18432), valu("v_mul_lo_u32", va, tmp, S_T1),
          valu("v_and_b32", tmp, 15, vrow), valu("v_lshl_add_u32", va, tmp, 4, va),
          valu("v_lshrrev_b32", tmp, 2, vi), valu("v_lshl_add_u32", va, tmp, 10, va),
          valu("v_and_b32", tmp, 3, vi), valu("v_lshl_add_u32", va, tmp, 8, va),
          valu("v_add_u32", vb, 16384, va), valu("v_mov_b32", tmp, OOB),
          valu("v_cndmask_b32", vb, tmp, vb, "vcc")]
    for j in range(3):
        o += [valu("v_accvgpr_write_b32", A_LN[j][d], X[j][d]) for d in range(4)]
    st = [[bstore(A_LN[0], va, SRD_E, 0, tag="ln", flags=SC1)],
          group(salu("s_movk_i32", S_ST, 8192), bstore(A_LN[1], va, SRD_E, S_ST, tag="ln", flags=SC1)),
          [bstore(A_LN[2], vb, SRD_E, 0, tag="ln", flags=SC1)]]
    return o[:nload], o[nload:], st

def kv_dma(t):
    g = []
    for j in range(4):
        g.append(group(salu("s_add_u32", "m0", S_WL, (t & 3) * 16384 + j * 4096),
                       salu("s_add_u32", S_SO, S_WOFF, t * 262144 + j * 65536),
                       dma(KV_DW[j & 1], SRD_A, S_SO, tag=("dma", t))))
        g.append(group(salu("s_add_u32", "m0", S_WL, 65536 + (t & 3) * 16384 + j * 4096),
                       salu("s_add_u32", S_SO, S_AOFF, t * 64 + j * 65536),
                       dma(KV_DA, SRD_B, S_SO, tag=("dma", t))))
    return g

def kv_cfg(swap):
    c = Cfg()
    c.NA, c.NB, c.T, c.NS, c.KK = 8, 8, 16, 4, 1
    c.acc = kv_acc(swap); c.swap = swap
    c.ring = [A(32 + 4 * i, 4) for i in range(4)]
    c.bmode = "lds"
    c.breg = lambda par, b: A(48 + 32 * par + 4 * b, 4)
    c.aread = lambda t, kk, a, hh: (KV_AA[a], (t & 3) * 16384 + hh * 2048)
    c.bread = lambda t, kk, b: (KV_BA, (t & 3) * 16384 + b * 1024)
    c.dma = kv_dma
    c.delay = 8; c.npre = 2; c.dma_span = 40; c.first_span = 36
    if DIAG == 2: c.stamp = lambda t: stamp('kv%d' % t)
    return c

def w320_dma_addrs(dst, npieces, s_p64, rowstride, bshift, s_wb, tmp):
    t = lambda i: V(tmp + i)
    o = []
    for j in range(npieces):
        o += [valu("v_add_u32", t(0), s_p64, V_L)]
        if j: o += [valu("v_add_u32", t(0), 64 * j, t(0))]
        o += [valu("v_mul_u32_u24", t(1), 3277, t(0)), valu("v_lshrrev_b32", t(1), 16, t(1)),
              valu("v_mul_u32_u24", t(2), 20, t(1)), valu("v_sub_u32", t(2), t(0), t(2)),
              valu("v_bfe_u32", t(3), t(1), bshift, 1), valu("v_lshlrev_b32", t(3), 1, t(3)), valu("v_xor_b32", t(2), t(2), t(3)),
              salu("s_movk_i32", S_T0, rowstride), valu("v_mul_lo_u32", t(1), t(1), S_T0),
              valu("v_lshl_add_u32", t(1), t(2), 4, t(1)), valu("v_add_u32", dst[j], s_wb, t(1))]
    return o

def gu_dma(t, sreg, tag):
    g = []
    so = salu("s_mov_b32", sreg, t * 589824)
    for j in range(10):
        m0 = salu("s_add_u32", "m0", S_GWL, (t % 3) * GSTG + j * 1024)
        d = dma(GU_DW[j], SRD_D, sreg, tag=tag); d.deps = [m0, so]
        g.append(([so] if j == 0 else []) + [m0, d])
    return g

A_GB = lambda t, kk, b: A(192 + (t & 1) * 32 + (kk * 4 + b) * 4, 4)
def row_base(b): return S_ML if b < 2 else S_MS
S_XL, S_XS = SP(11), SP(12)
def xn_load(dst, t, kk, b):
    return group(salu("s_add_u32", S_SB, S_XL if b < 2 else S_XS, (b & 1) * 18432 + t * 2048), bload(dst, V_L16, SRD_E, S_SB, kk * 1024))

def p0():
    vt = V(90)
    o = [smem_load(S(4, 16), S(0, 2), 0), smem_load(S(20, 8), S(0, 2), 64), smem_load(P_WS, S(0, 2), 96),
         salu("s_cmp_ge_u32", None, S_ID, 256), branch("s_cbranch_scc1", "f_done"),
         valu("v_lshrrev_b32", V(1), 6, V(0)), valu("v_readfirstlane_b32", S_W, V(1)), valu("v_mov_b32", vt, V(0)),
         valu("v_and_b32", V_L, 63, V(0)), valu("v_lshrrev_b32", V_G, 4, V_L), valu("v_and_b32", V_C, 15, V_L),
         valu("v_lshlrev_b32", V_L16, 4, V_L),
         salu("s_and_b32", S_X, S_ID, 7), salu("s_lshr_b32", S_T1, S_ID, 3), salu("s_and_b32", S_Q, S_T1, 3), salu("s_lshr_b32", S_J, S_T1, 2),
         salu("s_lshl_b32", S_H, S_X, 2), salu("s_add_u32", S_H, S_H, S_Q),
         salu("s_and_b32", S_WN, S_W, 1), salu("s_lshr_b32", S_WM, S_W, 1), salu("s_lshl_b32", S_WL, S_W, 10),
         salu("s_lshr_b32", S_ISV, S_Q, 1),
         waitcnt(lgkm=0)]
    o += stamp("start") + stamp_rt("rt0")
    o += srd(SRD_D, P_X, 0, 2048 * 1152) + srd(SRD_F, P_WS, WS_FLG, SZ_FLG)
    ln_ld, ln_cmp, ln_st = layernorm()
    o += ln_ld
    vtag = V(91)
    o += [valu("v_mov_b32", V(92), 0), salu("s_mov_b32", S_T0, FG_TAG), bload(vtag, V(92), SRD_F, S_T0, flags=SC1)]
    o += [salu("s_cmp_eq_u32", None, S_ISV, 1),
          salu("s_cselect_b32", S_T0, P_WUV[0], P_WUK[0]), salu("s_cselect_b32", S_T1, P_WUV[1], P_WUK[1]),
          salu("s_mov_b32", SRD_A[0], S_T0), salu("s_mov_b32", SRD_A[1], S_T1), salu("s_mov_b32", SRD_A[2], 512 * 8192),
          salu("s_mov_b32", SRD_A[3], 0x20000)]
    o += srd(SRD_B, P_CKV, 0, 2048 * 1024)
    o += [salu("s_lshl_b32", S_HP, S_X, 1), salu("s_and_b32", S_T0, S_Q, 1), salu("s_add_u32", S_HP, S_HP, S_T0),
          salu("s_lshl_b32", S_WOFF, S_HP, 9), salu("s_lshl_b32", S_AOFF, S_J, 18)]
    t = lambda i: V(96 + i)
    o += [valu("v_lshrrev_b32", t(0), 5, V_L), salu("s_lshl_b32", S_T0, S_W, 1), valu("v_add_u32", t(0), S_T0, t(0)),
          valu("v_and_b32", t(1), 3, t(0)),
          valu("v_bfe_u32", t(2), V_L, 1, 4), valu("v_xor_b32", t(2), t(2), t(1)),
          valu("v_lshlrev_b32", t(0), 13, t(0)), valu("v_and_b32", t(3), 1, V_L), valu("v_lshl_add_u32", t(0), t(3), 4, t(0)),
          valu("v_lshl_add_u32", KV_DW[0], t(2), 5, t(0)),
          valu("v_xor_b32", t(2), 4, t(2)), valu("v_lshl_add_u32", KV_DW[1], t(2), 5, t(0))]
    o += [valu("v_lshrrev_b32", t(0), 2, V_L), valu("v_bfe_u32", t(1), V_L, 4, 1), valu("v_mul_u32_u24", t(1), 3, t(1)),
          valu("v_and_b32", t(2), 3, V_L), valu("v_xor_b32", t(1), t(1), t(2)),
          salu("s_lshl_b32", S_T0, S_W, 4), valu("v_add_u32", t(0), S_T0, t(0)),
          valu("v_lshlrev_b32", t(0), 10, t(0)), valu("v_lshl_add_u32", KV_DA, t(1), 4, t(0))]
    o += lin(kv_dma(0)) + lin(kv_dma(1))
    if "o" in OPT_TOUCH:
        o += [valu("v_lshrrev_b32", t(0), 2, vt), salu("s_lshl_b32", S_T0, S_J, 6), valu("v_add_u32", t(0), S_T0, t(0)),
              valu("v_lshlrev_b32", t(0), 13, t(0)), valu("v_and_b32", t(1), 3, vt), valu("v_lshl_add_u32", t(0), t(1), 7, t(0)),
              valu("v_add_u32", t(0), S_WOFF, t(0)), bload(A_DUMMY, t(0), SRD_A, 0, tag="touch"),
              salu("s_lshl_b32", S_T0, S_Q, 16), salu("s_add_u32", S_T0, S_T0, S_AOFF),
              valu("v_lshlrev_b32", t(2), 7, vt), valu("v_add_u32", t(2), S_T0, t(2)), bload(A_DUMMY, t(2), SRD_B, 0, tag="touch"),
              valu("v_add_u32", t(3), 32768, t(2)), bload(A_DUMMY, t(3), SRD_B, 0, tag="touch")]
    if "g" in OPT_TOUCH:
        o += [salu("s_mul_i32", S_T0, S_ID, 162), valu("v_add_u32", t(0), S_T0, vt), valu("v_lshlrev_b32", t(0), 7, t(0)),
              valu("v_cmp_gt_u32", "vcc", 162, vt), valu("v_mov_b32", t(1), OOB), valu("v_cndmask_b32", t(0), t(1), t(0), "vcc")]
        for p in (P_WG, P_WU):
            o += srd(SRD_T, p, 0, 576 * 9216) + [bload(A_DUMMY, t(0), SRD_T, 0, tag="touch")]
    o += srd(SRD_E, P_WS, WS_XN, SZ_XN) + srd(SRD_C, P_WS, WS_KV, SZ_KV)
    o += [salu("s_lshl_b32", S_T0, S_HP, 1), salu("s_add_u32", S_T0, S_T0, S_WN), salu("s_lshl_b32", S_KVOUT, S_T0, 20),
          salu("s_lshl_b32", S_T0, S_J, 1), salu("s_add_u32", S_T0, S_T0, S_WM), salu("s_lshl_b32", S_T0, S_T0, 16),
          salu("s_add_u32", S_KVOUT, S_KVOUT, S_T0), salu("s_lshl_b32", S_T0, S_ISV, 14), salu("s_add_u32", S_KVOUT, S_KVOUT, S_T0)]
    o += [valu("v_cmp_eq_u32", "vcc", 0, vt), valu("v_mov_b32", t(4), OOB), valu("v_cndmask_b32_e64", V_FOFF, t(4), 0, "vcc")]
    o += [valu("v_lshrrev_b32", t(0), 2, V_C), valu("v_and_b32", t(1), 1, V_G), valu("v_lshl_or_b32", t(1), t(1), 2, t(0)),
          valu("v_lshl_add_u32", t(0), V_G, 3, t(0)), valu("v_lshlrev_b32", t(0), 9, t(0)),
          valu("v_and_b32", t(2), 3, V_C), valu("v_lshl_add_u32", t(0), t(2), 3, t(0)),
          salu("s_lshl_b32", S_T0, S_WN, 8), valu("v_add_u32", t(0), S_T0, t(0))]
    for x in range(8):
        o += [valu("v_xor_b32", t(2), x, t(1)), valu("v_lshl_add_u32", KV_AA[x], t(2), 5, t(0))]
    o += [salu("s_lshl_b32", S_T0, S_WM, 13), salu("s_add_u32", S_T0, S_T0, 65536),
          valu("v_lshlrev_b32", t(0), 6, V_C), valu("v_add_u32", t(0), S_T0, t(0)),
          valu("v_bfe_u32", t(1), V_C, 2, 1), valu("v_mul_u32_u24", t(1), 3, t(1)), valu("v_xor_b32", t(1), t(1), V_G),
          valu("v_lshl_add_u32", KV_BA, t(1), 4, t(0))]
    o += [salu("s_sub_u32", S_T0, 15, S_J), salu("s_lshl_b32", S_T0, S_T0, 3), salu("s_lshl_b32", S_T1, S_W, 1),
          salu("s_add_u32", S_ML, S_T0, S_T1), salu("s_lshl_b32", S_T0, S_J, 3), salu("s_add_u32", S_MS, S_T0, S_T1),
          salu("s_mul_i32", S_XL, S_ML, 18432), salu("s_mul_i32", S_XS, S_MS, 18432)]
    S_P64 = SP(13)
    o += [salu("s_cmp_ge_u32", None, S_W, 2),
          salu("s_cselect_b32", S_T0, P_WU[0], P_WG[0]), salu("s_cselect_b32", S_T1, P_WU[1], P_WG[1]),
          salu("s_mov_b32", SRD_D[0], S_T0), salu("s_mov_b32", SRD_D[1], S_T1), salu("s_mov_b32", SRD_D[2], 576 * 9216),
          salu("s_mov_b32", SRD_D[3], 0x20000)]
    o += [salu("s_lshr_b32", S_T0, S_W, 1), salu("s_mul_i32", S_GWL, S_T0, 20480), salu("s_and_b32", S_T0, S_W, 1),
          salu("s_mul_i32", S_P64, S_T0, 640), salu("s_mul_i32", S_T0, S_T0, 10240), salu("s_add_u32", S_GWL, S_GWL, S_T0),
          salu("s_and_b32", S_GPAR, S_H, 1), salu("s_mul_i32", S_GWB, S_H, 288), salu("s_lshl_b32", S_T0, S_GPAR, 5),
          salu("s_sub_u32", S_GWB, S_GWB, S_T0)]
    o += w320_dma_addrs(GU_DW, 10, S_P64, 9216, 3, S_GWB, 96)
    o += ln_cmp
    o += [valu("v_add_u32", V_INC, 2, vtag), valu("v_or_b32", V_INC, 1, V_INC)]
    o += stamp("ln done")
    return o, ln_st

def ln_poll():
    a, b = KV_DW[0], KV_DW[1]
    return [valu("v_and_b32", a, 15, V_L), valu("v_lshlrev_b32", a, 2, a), valu("v_bfe_u32", b, V_L, 4, 1),
            salu("s_sub_u32", S_T0, 15, S_J), salu("s_sub_u32", S_T1, S_J, S_T0), salu("s_lshl_b32", S_T1, S_T1, 7), salu("s_lshl_b32", S_T0, S_T0, 7),
            valu("v_mul_lo_u32", b, b, S_T1), valu("v_add_u32", a, a, b), valu("v_add_u32", a, S_T0, a), poll(KV_DA, a, 0, FG_LN)]

def kv_store(f):
    off = (f >> 4) * 32768 + (f & 15) * 1024
    return group(salu("s_add_u32", S_ST, S_KVOUT, off & ~4095), bstore(blk(f, 0), V_L16, SRD_C, S_ST, off & 4095, tag="kvst", flags=SC1ST))

def p1(swap, ln_st):
    c = kv_cfg(swap)
    def extra(G, main, px):
        g = 44
        for grp in ln_st: g = put_seq(G, grp, g) + 6
        G.items[px[4]].insert(0, wait_tag("ln"))
        g = put_seq(G, [salu("s_lshr_b32", S_ST, S_ID, 4), salu("s_lshl_b32", S_ST, S_ST, 7), salu("s_and_b32", S_S2, S_ID, 15),
                        salu("s_lshl_b32", S_S2, S_S2, 2), salu("s_add_u32", S_ST, S_ST, S_S2)], px[4] - 12)
        G.put(flag_store(S_ST, FG_LN), max(g + 1, px[4] + 1))
        g = put_seq(G, ln_poll(), px[13] + 4)
        g = put_check(G, px[14] + 2, flag_check("f_ln%d" % swap, ln_poll, KV_DA))
        for tt in range(2):
            for kk in range(2):
                for b in range(4): g = put_seq(G, xn_load(A_GB(tt, kk, b), tt, kk, b), g) + 2
        g = px[15] + 2
        for grp in gu_dma(0, S_S2, ("gdma", 0)):
            for ins in grp: g = G.put(ins, g + (0 if ins.kind == "salu" else 1))
            g += 2
    pre, body = gemm_main(c, extra)
    o = pre + stamp("kv X0") + body + [wait_ds(), barrier()] + stamp("kv main")
    for f in list(range(28, 32)) + list(range(28)):
        x, y = blk(f, 0), blk(f, 1)
        if f >= 28:
            tx, ty = V(8, 4), V(12, 4)
            o += [valu("v_accvgpr_read_b32", tx[r], x[r]) for r in range(4)] + [valu("v_accvgpr_read_b32", ty[r], y[r]) for r in range(4)]
            o += [valu("v_cvt_pk_bf16_f32", tx[0], tx[0], tx[1]), valu("v_cvt_pk_bf16_f32", tx[1], tx[2], tx[3]),
                  valu("v_cvt_pk_bf16_f32", tx[2], ty[0], ty[1]), valu("v_cvt_pk_bf16_f32", tx[3], ty[2], ty[3])]
            off = (f >> 4) * 32768 + (f & 15) * 1024
            o += group(salu("s_add_u32", S_ST, S_KVOUT, off & ~4095), bstore(tx, V_L16, SRD_C, S_ST, off & 4095, tag="kvst", flags=SC1ST))
        else:
            o += [valu("v_cvt_pk_bf16_f32", x[0], x[0], x[1]), valu("v_cvt_pk_bf16_f32", x[1], x[2], x[3]),
                  valu("v_cvt_pk_bf16_f32", x[2], y[0], y[1]), valu("v_cvt_pk_bf16_f32", x[3], y[2], y[3])]
    return o
SRD_KA, SRD_KB = SRD_D, SRD_B
S_T, S_N, S_N1, S_I, S_HB, S_MK, S_G1, S_G2, S_OUT, S_PASS, S_TCH = [SP(i) for i in range(11)]
V_KA, V_KB, V_VA, V_VB, V_D = V(8), V(9), V(10), V(11), V(12)
NR = 16
RING = [A(72 + 4 * i, 4) for i in range(NR)]
V_TA, V_TA2, V_TD = V(7), V(21), V(20)
VS = lambda buf, kb2, qb: V(128 + ((buf * 2 + kb2) * 2 + qb) * 4, 4)
VP = lambda buf, qb: V(160 + (buf * 2 + qb) * 4, 4)
VNEG = lambda qb: V(176 + qb * 4, 4)
VONE = V(184, 4)
VB_ = lambda sg, d, r: V(188 + (sg * 3 + d + 1) * 4 + r)
AO = lambda db, qb: A((db * 2 + qb) * 4, 4)
AL = lambda qb: A(64 + qb * 4, 4)
ATMP = 14

def kv_part(srd_, soff, ldsoff, mk):
    m0 = salu("s_add_u32", "m0", mk, ldsoff); so = salu("s_add_u32", S_SO, soff[0], soff[1])
    d = [dma(V_L16, srd_, S_SO, k * 1024, tag="kv") for k in range(4)]
    for x in d: x.deps = [m0, so]
    return [[m0, so, d[0]], [d[1]], [d[2]], [d[3]]]

def unit_mfmas(sg, do_qk, do_pv):
    sb = (sg + 1) & 1; pb = (sg - 1) & 1
    m = []; fr = []
    for half in range(2):
        if do_qk:
            for ds in range(4):
                pos = half * 8 + ds
                fr.append((pos, "k", (half, ds), len(m)))
                for qb in range(2):
                    acc = VS(sb, half, qb)
                    m.append(mfma(acc, RING[pos % NR], VQ(qb, ds), VNEG(qb) if ds == 0 else acc))
        if do_pv:
            for d in range(4):
                db = half * 4 + d; pos = half * 8 + 4 + d
                fr.append((pos, "v", db, len(m)))
                for qb in range(2):
                    m.append(mfma(AO(db, qb), RING[pos % NR], VP(pb, qb), AO(db, qb)))
    if do_pv:
        for qb in range(2): m.append(mfma(AL(qb), VONE, VP(pb, qb), AL(qb)))
    return m, fr

def frag_read(sg, kind, idx, pos, after_x):
    if kind == "k":
        half, ds = idx
        u = sg + 1
        tile, hf = (u >> 1) & 1, u & 1
        off = tile * 16384 + (2 * hf + half) * 4096 + ds * 1024
        addr = V_KB if u >= 4 else V_KA
    else:
        u = sg - 1
        tau = u >> 1 if u >= 0 else -1
        hf = u & 1
        off = ((tau - 1) & 1) * 16384 + (hf * 8 + idx) * 1024
        addr = V_VB if tau >= 1 else V_VA
    assert (addr in (V_KB, V_VB)) == after_x, (sg, kind, idx)
    return ds_read(RING[pos % NR], addr, off)

def softmax_items(sg, masked):
    sb = sg & 1
    ex = []; cv = []; mk = []
    for qb in range(2):
        for kb2 in range(2):
            s = VS(sb, kb2, qb)
            for r in range(4):
                if masked: mk.append(valu("v_min_f32", s[r], s[r], VB_(sg, qb - kb2, r)))
                ex.append(valu("v_exp_f32", s[r], s[r]))
            for h in range(2):
                cv.append(valu("v_cvt_pk_bf16_f32", VP(sb, qb)[kb2 * 2 + h], s[2 * h], s[2 * h + 1]))
    return ex, cv, mk

def stream_scalars():
    return [salu("s_mov_b32", S_G1, S_G2),
            salu("s_add_u32", S_T0, S_N, 2), salu("s_sub_u32", S_T1, S_T0, S_N1), salu("s_cmp_lt_u32", None, S_T0, S_N1),
            salu("s_cselect_b32", S_T1, S_T0, S_T1), salu("s_lshl_b32", S_G2, S_T1, 16), salu("s_add_u32", S_G2, S_G2, S_HB),
            salu("s_cmp_le_u32", None, S_T0, 16), salu("s_cselect_b32", SRD_KB[2], SZ_KV, 0),
            salu("s_cmp_le_u32", None, S_T0, 17), salu("s_cselect_b32", SRD_KA[2], SZ_KV, 0)]

def touch_scalars():
    return [salu("s_cmp_lt_u32", None, S_N, 6),
            salu("s_cselect_b32", SRD_T[0], P_WD[0], P_WO[0]), salu("s_cselect_b32", SRD_T[1], P_WD[1], P_WO[1]),
            salu("s_mov_b32", SRD_T[2], 4096 * 1152), salu("s_cmov_b32", SRD_T[2], 4608 * 1152), salu("s_cselect_b32", S_TCH, 0, 6),
            salu("s_sub_u32", S_TCH, S_N, S_TCH), salu("s_lshl_b32", S_TCH, S_TCH, 20)]

def att_body(last, extra=None):
    main = []; frs = []; base = []
    for sg in range(4):
        m, fr = unit_mfmas(sg, do_qk=not (last and sg == 3), do_pv=True)
        base.append(len(main)); main += m; frs.append(fr)
    if last:
        m, fr = unit_mfmas(4, do_qk=False, do_pv=True)
        base.append(len(main)); main += m; frs.append(fr)
    n = len(main)
    G = Gaps(n, sal_ok=lambda g: g % 2 == 0)
    seq = []
    for sg, fr in enumerate(frs):
        for (pos, kind, idx, g0) in fr: seq.append((sg, pos, kind, idx, base[sg] + g0))
    if not last:
        m4, fr4 = unit_mfmas(0, True, True)
        for (pos, kind, idx, g0) in fr4:
            if pos < NR: seq.append((4, pos, kind, idx, n + g0))
    lastuse = {p: -1 for p in range(NR)}
    xgap = base[2] + 5
    G.block(xgap, [wait_tag("kv"), wait_ds(), barrier()])
    for k, (sg, pos, kind, idx, g0) in enumerate(seq):
        r = pos % NR
        if not (sg == 0 and pos < NR):
            after_x = (kind == "k" and sg + 1 >= 4) or (kind == "v" and ((sg - 1) >> 1) >= 1)
            earliest = lastuse[r]
            if after_x: earliest = max(earliest, xgap + 1)
            latest = g0 - 3 if g0 < n else n - 1
            if not after_x: latest = min(latest, xgap - 3)
            G.put(frag_read(sg, kind, idx, pos, after_x), max(earliest, 0), latest=latest)
        lastuse[r] = g0 + 1
    for sg in range(4):
        ex, cv, mk = softmax_items(sg, last)
        end = (base[sg + 1] if sg + 1 < len(base) else n)
        g = base[sg]
        stepg = 2 if end - base[sg] >= 32 else 1
        egap = []
        for k, e in enumerate(ex):
            while G.vec.get(g, 0) != 0 and g < end - 2: g += 1
            g = min(g, end - 2)
            if mk: G.items.setdefault(g, []).append(mk[k])
            G.put_force(e, g, g); egap.append(g); g += stepg
        for k, c in enumerate(cv):
            G.put_force(c, min(egap[2 * k + 1] + 1, end - 1), end - 1)
    g = 2
    for ins in stream_scalars(): g = G.put(ins, g) + 1
    if not last and "a" in OPT_TOUCH:
        for ins in touch_scalars(): g = G.put(ins, g) + 1
        G.put(valu("v_add_u32", V_TA2, S_TCH, V_TA), g + 2)
        G.put(bload(V_TD, V_TA2, SRD_T, 0, tag="touch"), g + 6)
    assert g < xgap
    parts = kv_part(SRD_KB, (S_G2, 0), 0, S_MK) + kv_part(SRD_KB, (S_G2, 32768), 16384, S_MK) \
        + kv_part(SRD_KA, (S_G1, 49152), 65536, S_MK) + kv_part(SRD_KB, (S_G2, 16384), 65536 + 16384, S_MK)
    g = xgap + 3
    for grp in parts:
        sal = [i for i in grp if i.kind == "salu"]
        for k, ins in enumerate(sal):
            gs = g - len(sal) + k
            assert not any(x.kind == "dma" for x in G.items.get(gs, []))
            G.sal[gs] = G.sal.get(gs, 0) + 1
            G._add(gs, ins, True)
        for ins in grp:
            if ins.kind != "salu":
                gd = g if G.vec.get(g, 0) < G.cap else (g + 1 if G.vec.get(g + 1, 0) < G.cap else g)
                G.put_force(ins, gd, gd)
        g += 3
    assert g - 3 <= n - 3, (g, n)
    tail = []
    for x in (V_KA, V_VA): G.put(valu("v_xor_b32", x, 32768, x), xgap + 1)
    lastrd = max(k for k, lst in G.items.items() for i in lst if i.kind == "ds_r")
    gl = max(k for k, lst in G.items.items() for i in lst if i.kind == "dma")
    if last:
        tail = [valu("v_xor_b32", x, 32768, x) for x in (V_KB, V_VB)]
        tail += [salu("s_xor_b32", S_MK, S_MK, 32768), salu("s_add_u32", S_N, S_N, 1)]
    else:
        for x in (V_KB, V_VB): G.put_force(valu("v_xor_b32", x, 32768, x), min(lastrd + 1, n - 1), n - 1)
        ga = G.put(salu("s_xor_b32", S_MK, S_MK, 32768), gl + 1)
        gb = G.put(salu("s_add_u32", S_N, S_N, 1), gl + 1)
        G.put(salu("s_sub_u32", S_I, S_I, 1), 0)
        tail = [salu("s_cmp_lg_u32", None, S_I, 0)]
    if extra: extra(G, xgap, n)
    return interleave(main, G.items) + tail

def tile_prologue():
    o = []
    o += [valu("v_accvgpr_write_b32", A(i), 0) for i in range(72)]
    o += [valu("v_mov_b32", VP(1, qb)[r], 0) for qb in range(2) for r in range(4)]
    for half in range(2):
        for ds in range(4): o.append(ds_read(RING[half * 4 + ds], V_KA, half * 4096 + ds * 1024))
    for half in range(2):
        for ds in range(4):
            for qb in range(2):
                acc = VS(0, half, qb)
                o.append(mfma(acc, RING[half * 4 + ds], VQ(qb, ds), 0 if ds == 0 else acc))
    m, fr = unit_mfmas(0, True, True)
    for (pos, kind, idx, g0) in fr:
        if pos < NR: o.append(frag_read(0, kind, idx, pos, False))
    o += [salu("s_cmp_lg_u32", None, S_T, 0), branch("s_cbranch_scc1", "f_nomask"), nop(7)]
    for qb in range(2):
        for kb2 in range(2):
            for r in range(4):
                s = VS(0, kb2, qb)
                o.append(valu("v_min_f32", s[r], s[r], VB_(0, qb - kb2, r)))
    o += [label("f_nomask"), nop(7)]
    for qb in range(2):
        m0, m1 = V(ATMP + 2 * qb), V(ATMP + 2 * qb + 1)
        s0, s1 = VS(0, 0, qb), VS(0, 1, qb)
        o += [valu("v_max3_f32", m0, s0[0], s0[1], s0[2]), valu("v_max3_f32", m0, m0, s0[3], s1[0]),
              valu("v_max3_f32", m0, m0, s1[1], s1[2]), valu("v_max_f32", m0, m0, s1[3])]
        o += [valu("v_mov_b32", m1, m0), valu("v_permlane16_swap_b32", m0, m1), valu("v_max_f32", m0, m0, m1),
              valu("v_mov_b32", m1, m0), valu("v_permlane32_swap_b32", m0, m1), valu("v_max_f32", m0, m0, m1)]
        for r in range(4): o.append(valu("v_sub_f32", VNEG(qb)[r], 0, m0))
        for s in (s0, s1):
            for r in range(4): o.append(valu("v_sub_f32", s[r], s[r], m0))
    o.append(waitcnt(lgkm=0))
    return o

def tile_epilogue():
    o = []
    for qb in range(2):
        rl = V(ATMP + qb)
        o += [valu("v_accvgpr_read_b32", rl, AL(qb)[0]), valu("v_rcp_f32", rl, rl)]
    for qb in range(2):
        rl = V(ATMP + qb)
        for ds in range(4):
            x = V(128 + ds * 8, 8)
            for hb in range(2):
                for r in range(4): o.append(valu("v_accvgpr_read_b32", x[hb * 4 + r], AO(2 * ds + hb, qb)[r]))
            for k in range(8): o.append(valu("v_mul_f32", x[k], x[k], rl))
            for k in range(4): o.append(valu("v_cvt_pk_bf16_f32", x[k], x[2 * k], x[2 * k + 1]))
            o += group(salu("s_add_u32", S_ST, S_OUT, qb * 278528), bstore(x.sub(0, 4), V_L16, SRD_C, S_ST, ds * 1024, tag="ctx", flags=SC1ST))
    return o


def p4_consts():
    o = []
    t = lambda i: V(ATMP + i)
    o += [valu("v_mov_b32", V_KA, V_L16), valu("v_xor_b32", V_KB, 32768, V_L16),
          valu("v_add_u32", V_VA, 65536, V_L16), valu("v_xor_b32", V_VB, 32768, V_VA),
          valu("v_lshlrev_b32", V_D, 2, V_G), valu("v_sub_u32", V_D, V_D, V_C)]
    o += [valu("v_mov_b32", VONE[r], 0x3f803f80) for r in range(4)]
    o += [salu("s_lshl_b32", S_T1, S_W, 5), valu("v_mov_b32", t(0), 0x7f800000), valu("v_mov_b32", t(1), 0xff800000)]
    for sg in range(4):
        for d in (-1, 0, 1):
            for r in range(4):
                o += [salu("s_add_i32", S_T0, S_T1, -32 * sg + 16 * d - r), valu("v_cmp_ge_i32", "vcc", S_T0, V_D),
                      valu("v_cndmask_b32", VB_(sg, d, r), t(1), t(0), "vcc")]
    o += [salu("s_lshl_b32", S_T0, S_ID, 2), salu("s_add_u32", S_T0, S_T0, S_W), salu("s_lshl_b32", S_T0, S_T0, 10),
          valu("v_lshlrev_b32", V_TA, 7, V_L), valu("v_add_u32", V_TA, S_T0, V_TA),
          valu("v_cmp_gt_u32", "vcc", 8, V_L), valu("v_mov_b32", t(2), OOB), valu("v_cndmask_b32", V_TA, t(2), V_TA, "vcc"),
          salu("s_mov_b32", SRD_T[3], 0x20000), salu("s_mov_b32", S_PASS, 0)]
    return o

GU_AA = [[V(8 + 2 * st + p) for p in range(2)] for st in range(3)]
S_GOL, S_GOS = SP(14), SP(15)

def accgu(mat, a, b):
    i = (a * 2 + mat) * 4 + b
    return blk(i, 1) if i < 28 else A(4 * (i - 28), 4)

def gu_cfg():
    c = Cfg()
    c.NA, c.NB, c.T, c.NS, c.BD = 18, 4, 9, 3, 2
    c.acc = lambda ai, b: accgu(ai & 1, ai >> 1, b)
    c.ring = [A(176 + 4 * i, 4) for i in range(4)]
    c.bmode = "direct"
    c.breg = A_GB
    def aread(t, kk, ai, hh):
        mat, a = ai & 1, ai >> 1
        return GU_AA[t % 3][a & 1], mat * 20480 + kk * 10240 + hh * 1280 + (a - (a & 1)) * 32
    c.aread = aread
    c.bload = lambda t, kk, b: xn_load(A_GB(t, kk, b), t, kk, b)
    c.dma = lambda t: gu_dma(t, S_SO, ("dma", t))
    c.delay = 6; c.dma_span = 80; c.npre = 1; c.first_span = 100
    if DIAG == 4: c.stamp = lambda t: stamp('gu%d' % t)
    return c

def kv_poll():
    return group_poll(V(30), V(31), S_S2, 16, FG_KV, [salu("s_lshr_b32", S_S2, S_H, 1)])

def p2():
    o = []
    c = gu_cfg()
    t = lambda i: V(16 + i)
    o += [valu("v_lshrrev_b32", t(0), 2, V_C), valu("v_lshl_add_u32", t(0), V_G, 3, t(0)), valu("v_mul_u32_u24", t(0), 320, t(0)),
          valu("v_and_b32", t(1), 3, V_C), valu("v_lshl_add_u32", t(0), t(1), 3, t(0)), valu("v_and_b32", t(1), 1, V_G)]
    for p in range(2):
        o += [salu("s_add_u32", S_T0, S_GPAR, p), valu("v_xor_b32", t(2), S_T0, t(1)), valu("v_lshl_add_u32", t(2), t(2), 5, t(0))]
        for st in (2, 1, 0):
            o += [valu("v_add_u32", GU_AA[st][p], st * GSTG, t(2)) if st else valu("v_mov_b32", GU_AA[st][p], t(2))]
    o += [salu("s_mul_i32", S_T1, S_H, 9), salu("s_lshr_b32", S_T1, S_T1, 1), salu("s_add_u32", S_T1, S_T1, 128), salu("s_lshl_b32", S_T1, S_T1, 10),
          salu("s_mul_i32", S_GOL, S_ML, 278528), salu("s_add_u32", S_GOL, S_GOL, S_T1),
          salu("s_mul_i32", S_GOS, S_MS, 278528), salu("s_add_u32", S_GOS, S_GOS, S_T1)]
    def extra(G, main, px):
        g = 110
        for f in range(28): g = put_seq(G, kv_store(f), g) + 30
        assert g < px[8], (g, px[8])
        G.items[px[8]].insert(0, wait_tag("kvst"))
        g = put_seq(G, [salu("s_lshl_b32", S_S2, S_HP, 7), salu("s_lshl_b32", S_T0, S_ISV, 5), salu("s_add_u32", S_S2, S_S2, S_T0),
                        salu("s_lshl_b32", S_T0, S_J, 2), salu("s_add_u32", S_S2, S_S2, S_T0)], px[8] - 30)
        assert g < px[8]
        G.put(flag_store(S_S2, FG_KV), px[8] + 1)
        put_seq(G, kv_poll(), px[8] + 60)
    pre, body = gemm_main(c, extra)
    def retag(lst):
        return [wait_tag(("gdma", 0)) if i.kind == "wait_tag" and i.tag == ("dma", 0) else i for i in lst]
    o += stamp("gu setup") + retag(pre) + body + [wait_ds(), barrier()] + stamp("gu main")
    return o

Q_DW = V(26); Q_AA = [V(8 + i) for i in range(8)]
S_QWL = SP(16)
A_QB = A_GB
def q_dma(t, tag):
    return [group(salu("s_add_u32", "m0", S_QWL, t * 16384 + j * 4096), salu("s_mov_b32", S_SO, t * 524288 + j * 131072),
                  dma(Q_DW, SRD_A, S_SO, tag=tag)) for j in range(4)]
def qacc(a, b): return V(128 + (a * 4 + b) * 4, 4)

C0 = -2.0 * 0.7978845608028654 * 1.4426950408889634
C1 = C0 * 0.044715
def gelu_phase():
    o = []
    free = lambda k: blk(k, 0)
    kc0, kc1, kone = free(0).sub(0, 2), free(0).sub(2, 2), free(1).sub(0, 2)
    tg, tu, t1 = free(2), free(3), free(4)
    HP = V(8, 18)
    VE, VO = V(27), V(28)
    t = lambda i: free(5)[i]
    o += srd(SRD_A, P_WQ, 0, 576 * 8192) + srd(SRD_B, P_WS, WS_HC, SZ_HC)
    o += [valu("v_lshrrev_b32", t(0), 4, V_L), salu("s_lshr_b32", S_T0, S_W, 1), salu("s_lshl_b32", S_T0, S_T0, 2),
          valu("v_or_b32", t(1), S_T0, t(0)), valu("v_bfe_u32", t(2), V_L, 1, 3), valu("v_xor_b32", t(2), t(2), t(1)),
          salu("s_lshl_b32", S_T0, S_W, 2), valu("v_add_u32", t(0), S_T0, t(0)), valu("v_lshlrev_b32", t(0), 13, t(0)),
          valu("v_and_b32", t(3), 1, V_L), valu("v_lshl_add_u32", t(0), t(3), 4, t(0)), valu("v_lshl_add_u32", t(0), t(2), 5, t(0)),
          salu("s_lshl_b32", S_T0, S_H, 8), valu("v_add_u32", Q_DW, S_T0, t(0)), salu("s_lshl_b32", S_QWL, S_W, 10)]
    o += [salu("s_cmp_eq_u32", None, S_GPAR, 0), salu("s_cselect_b32", S_T0, 0, OOB), salu("s_cselect_b32", S_T1, OOB, 0),
          valu("v_add_u32", VE, S_T0, V_L16), valu("v_add_u32", VO, S_T1, V_L16)]
    o += [valu("v_mov_b32", kc0[0], C0), valu("v_mov_b32", kc0[1], C0), valu("v_mov_b32", kc1[0], C1), valu("v_mov_b32", kc1[1], C1),
          valu("v_mov_b32", kone[0], 1.0), valu("v_mov_b32", kone[1], 1.0)]
    side = []
    for tt in range(9): side += q_dma(tt, ("qdma", tt))
    qb_ = [xn_load(A_QB(tt, kk, b), tt, kk, b) for tt in range(2) for kk in range(2) for b in range(4)]
    side = side[:20] + qb_ + side[20:]
    nblk = 36; k = 0
    for b in range(4):
        base_s = S_GOL if b < 2 else S_GOS
        so1 = salu("s_add_u32", S_ST, base_s, (b & 1) * 278528); so2 = salu("s_add_u32", S_S2, base_s, (b & 1) * 278528 + 4096)
        o += [so1, so2]
        def st(src, off, ks, imm=0):
            sreg, sd, im = (S_ST, so1, ks * 1024 + imm) if ks < 4 else (S_S2, so2, imm)
            i = bstore(src, off, SRD_B, sreg, im, tag="hst", flags=SC1ST); i.deps = [sd]
            return i
        for a in range(9):
            g, u = accgu(0, a, b), accgu(1, a, b)
            if g.k == "a":
                o += [valu("v_accvgpr_read_b32", tg[r], g[r]) for r in range(4)]; g = tg
            if u.k == "a":
                o += [valu("v_accvgpr_read_b32", tu[r], u[r]) for r in range(4)]; u = tu
            o += [valu("v_pk_mul_f32", t1.sub(2 * h, 2), g.sub(2 * h, 2), g.sub(2 * h, 2)) for h in range(2)]
            o += [valu("v_pk_mul_f32", u.sub(2 * h, 2), g.sub(2 * h, 2), u.sub(2 * h, 2)) for h in range(2)]
            o += [valu("v_pk_fma_f32", t1.sub(2 * h, 2), t1.sub(2 * h, 2), kc1, kc0) for h in range(2)]
            o += [valu("v_pk_mul_f32", t1.sub(2 * h, 2), t1.sub(2 * h, 2), g.sub(2 * h, 2)) for h in range(2)]
            o += [valu("v_exp_f32", t1[r], t1[r]) for r in range(4)]
            o += [valu("v_pk_add_f32", t1.sub(2 * h, 2), t1.sub(2 * h, 2), kone) for h in range(2)]
            o += [valu("v_rcp_f32", t1[r], t1[r]) for r in range(4)]
            o += [valu("v_pk_mul_f32", u.sub(2 * h, 2), u.sub(2 * h, 2), t1.sub(2 * h, 2)) for h in range(2)]
            o += [valu("v_cvt_pk_bf16_f32", HP[2 * a], u[0], u[1]), valu("v_cvt_pk_bf16_f32", HP[2 * a + 1], u[2], u[3])]
            if a == 0: o.append(st(HP.sub(0, 2), VO, 0, 8))
            if a & 1: o.append(st(HP.sub(2 * a - 2, 4), VE, a >> 1))
            elif a >= 2: o.append(st(HP.sub(2 * a - 2, 4), VO, a >> 1))
            if a == 8: o.append(st(HP.sub(16, 2), VE, 4))
            k += 1
            want = (len(side) * k) // nblk
            n0 = (len(side) * (k - 1)) // nblk
            for grp in side[n0:want]:
                o += (grp[:-1] + [nop(0)] + grp[-1:]) if grp[-1].kind == "dma" else grp
    return o

A_QRING = [A(176 + 4 * i, 4) for i in range(4)]
def q_cfg():
    c = Cfg()
    c.NA, c.NB, c.T, c.NS, c.BD = 8, 4, 9, 9, 2
    c.acc = qacc
    c.ring = A_QRING
    c.bmode = "direct"
    c.breg = A_QB
    c.aread = lambda t, kk, a, hh: (Q_AA[a], (t & 3) * 16384 + kk * 8192 + hh * 1024)
    c.bload = lambda t, kk, b: xn_load(A_QB(t, kk, b), t, kk, b)
    c.dma = lambda t: []
    c.delay = 6
    if DIAG == 3: c.stamp = lambda t: stamp('q%d' % t)
    return c

QSCALE = 1.4426950408889634 / (128 ** 0.5)
VQ = lambda qb, ds: V(64 + (qb * 4 + ds) * 4, 4)
VQS = lambda qb, ds: V(96 + (qb * 4 + ds) * 4, 4)

def p3():
    o = []
    c = q_cfg()
    t = lambda i: V(28 + i)
    o += flag_check("f_kv", kv_poll, V(30))
    o += [valu("v_lshrrev_b32", t(0), 2, V_C), valu("v_and_b32", t(1), 1, V_G), valu("v_lshl_or_b32", t(1), t(1), 2, t(0)),
          valu("v_lshl_add_u32", t(0), V_G, 3, t(0)), valu("v_lshlrev_b32", t(0), 8, t(0)),
          valu("v_and_b32", t(2), 3, V_C), valu("v_lshl_add_u32", t(0), t(2), 3, t(0))]
    for x in range(8):
        o += [valu("v_xor_b32", t(2), x, t(1)), valu("v_lshl_add_u32", Q_AA[x], t(2), 5, t(0))]
    o += srd(SRD_KA, P_WS, WS_KV, SZ_KV) + srd(SRD_KB, P_WS, WS_KV, SZ_KV) + srd(SRD_C, P_WS, WS_HC, SZ_HC)
    o += [salu("s_sub_u32", S_T, 15, S_J), salu("s_add_u32", S_N1, S_T, 1),
          salu("s_lshl_b32", S_HB, S_H, 20), salu("s_lshl_b32", S_T0, S_W, 12), salu("s_add_u32", S_HB, S_HB, S_T0),
          salu("s_mov_b32", S_MK, S_T0), salu("s_mov_b32", S_N, 0), salu("s_add_u32", S_G2, S_HB, 65536)]
    init = {2: kv_part(SRD_KB, (S_HB, 0), 0, S_MK) + kv_part(SRD_KB, (S_HB, 32768), 16384, S_MK),
            4: kv_part(SRD_KB, (S_HB, 65536), 32768, S_MK) + kv_part(SRD_KB, (S_HB, 65536 + 32768), 32768 + 16384, S_MK),
            6: kv_part(SRD_KB, (S_HB, 16384), 65536, S_MK) + kv_part(SRD_KB, (S_HB, 16384), 65536 + 16384, S_MK),
            8: kv_part(SRD_KB, (S_HB, 32768 + 16384), 98304, S_MK) + kv_part(SRD_KB, (S_HB, 65536 + 16384), 98304 + 16384, S_MK)}
    def extra(G, main, px):
        for tt in (4, 8):
            for x in range(8): G.items[px[tt]].append(valu("v_add_u32", Q_AA[x], 65536, Q_AA[x]))
        for tt, parts in init.items():
            g = px[tt] + 1
            for grp in parts:
                for ins in grp: g = G.put(ins, g + (0 if ins.kind == "salu" else 1))
                g += 2
    pre, body = gemm_main(c, extra)
    def retag(lst):
        return [wait_tag(("qdma", i.tag[1])) if i.kind == "wait_tag" and i.tag[0] == "dma" else i for i in lst]
    o += stamp("q setup") + retag(pre) + retag(body) + stamp("q main")
    sc = V(28, 2)
    o += [valu("v_mov_b32", sc[0], QSCALE), valu("v_mov_b32", sc[1], QSCALE)]
    for b in range(4):
        for ds in range(4):
            dst = VQ(b, ds) if b < 2 else VQS(b - 2, ds)
            for hb in range(2):
                a_ = qacc(2 * ds + hb, b)
                o += [valu("v_pk_mul_f32", a_.sub(2 * h, 2), a_.sub(2 * h, 2), sc) for h in range(2)]
                o += [valu("v_cvt_pk_bf16_f32", dst[hb * 2 + h], a_[2 * h], a_[2 * h + 1]) for h in range(2)]
    return o


F_DW = [V(22 + j) for j in range(5)]
F_AA = [[V(8 + 2 * st + p) for p in range(2)] for st in range(4)]
S_FWL, S_FHL, S_FHS, S_FCL, S_FCS, S_FOL, S_FOS, S_FPAR, S_WDO, S_WOO = [SP(11 + i) for i in range(10)]
S_FWB, S_FP64 = SP(21), SP(22)
FSTG = [131072, 0, 20480, 40960]
NH = 9
SRD_WD, SRD_WO = SRD_A, SRD_E
def facc(a, b): return V(32 + (a * 4 + b) * 4, 4)

def f_dma(t, sreg):
    srd_, base, tt = (SRD_WD, S_WDO, t) if t < NH else (SRD_WO, S_WOO, t - NH)
    g = []
    so = salu("s_add_u32", sreg, base, tt * 73728)
    for j in range(5):
        m0 = salu("s_add_u32", "m0", S_FWL, FSTG[t % 4] + j * 1024)
        d = dma(F_DW[j], srd_, sreg, tag=("dma", t)); d.deps = [m0, so]
        g.append(([so] if j == 0 else []) + [m0, d])
    return g

def f_breg(t, kk, b): return A(136 + (t % 3) * 32 + (kk * 4 + b) * 4, 4)
def f_bload(t, kk, b):
    if t < NH: base, tt = (S_FHL if b < 2 else S_FHS), t
    else: base, tt = (S_FCL if b < 2 else S_FCS), t - NH
    return group(salu("s_add_u32", S_SB, base, (b & 1) * 278528 + tt * 2048), bload(f_breg(t, kk, b), V_L16, SRD_C, S_SB, kk * 1024))

def f_cfg():
    c = Cfg()
    c.NA, c.NB, c.T, c.NS, c.BD = 9, 4, 17, 4, 3
    c.acc = facc
    c.ring = [A(232 + 4 * i, 4) for i in range(6)]
    c.bmode = "direct"
    c.breg = f_breg
    c.aread = lambda t, kk, a, hh: (F_AA[t % 4][a & 1], kk * 10240 + hh * 5120 + (a - (a & 1)) * 32)
    c.bload = f_bload
    c.dma = lambda t: f_dma(t, S_SO)
    c.delay = 6; c.dma_span = 40
    if DIAG == 5: c.stamp = lambda t: stamp('f%d' % t)
    return c

def f_setup():
    o = srd(SRD_WD, P_WD, 0, 4608 * 1152) + srd(SRD_WO, P_WO, 0, 4096 * 1152)
    o += [salu("s_mul_i32", S_FWL, S_W, 5120), salu("s_mul_i32", S_FP64, S_W, 320),
          salu("s_and_b32", S_FPAR, S_Q, 1), salu("s_mul_i32", S_FWB, S_Q, 288), salu("s_lshl_b32", S_T0, S_FPAR, 5),
          salu("s_sub_u32", S_FWB, S_FWB, S_T0),
          salu("s_mul_i32", S_WDO, S_X, 576 * 1152), salu("s_mul_i32", S_WOO, S_X, 512 * 1152)]
    o += w320_dma_addrs(F_DW, 5, S_FP64, 1152, 2, S_FWB, 28)
    for mb, sc_, sh, so_ in ((S_ML, S_FCL, S_FHL, S_FOL), (S_MS, S_FCS, S_FHS, S_FOS)):
        o += [salu("s_mul_i32", sc_, mb, 278528),
              salu("s_mul_i32", S_T1, S_X, 18 * 1024), salu("s_add_u32", sh, sc_, S_T1), salu("s_add_u32", sh, sh, 128 * 1024),
              salu("s_lshl_b32", S_T1, S_X, 14), salu("s_add_u32", sc_, sc_, S_T1),
              salu("s_lshr_b32", S_T0, mb, 1), salu("s_lshl_b32", S_T1, S_X, 6), salu("s_add_u32", S_T0, S_T0, S_T1),
              salu("s_mul_i32", S_T0, S_T0, 36), salu("s_mul_i32", S_T1, S_Q, 9), salu("s_add_u32", S_T0, S_T0, S_T1),
              salu("s_lshl_b32", so_, S_T0, 10)]
    return o

V_FP, V_FZ = V(27), V(19)
def jx(sreg): return [salu("s_lshl_b32", sreg, S_J, 3), salu("s_add_u32", sreg, sreg, S_X)]
def h_poll(): return group_poll(V_FP, V_FZ, S_S2, 4, FG_H, jx(S_S2))
def c_poll(): return group_poll(V_FP, V_FZ, S_S2, 4, FG_C, jx(S_S2))
def p_poll(): return group_poll(V_FP, V_FZ, S_S2, 8, FG_P, [salu("s_lshl_b32", S_S2, S_J, 2), salu("s_add_u32", S_S2, S_S2, S_Q)])
def own_slot(sreg, tmp, base):
    return jx(sreg) + [salu("s_lshl_b32", sreg, sreg, 7), salu("s_lshl_b32", tmp, S_Q, 2), salu("s_add_u32", sreg, sreg, tmp),
                       salu("s_add_u32", sreg, sreg, base)]

def p5():
    o = []
    c = f_cfg()
    o += h_poll()
    o += [wait_tag("kv"), wait_ds(), barrier()]
    o += flag_check("f_h", h_poll, V_FP)
    for tt in range(4): o += lin(c.dma(tt))
    for tt in range(3):
        for kk in range(2):
            for b in range(4): o += c.bload(tt, kk, b)
    t = lambda i: V(28 + i)
    o += [valu("v_lshrrev_b32", t(0), 2, V_C), valu("v_lshl_add_u32", t(0), V_G, 2, t(0)), valu("v_mul_u32_u24", t(0), 320, t(0)),
          valu("v_and_b32", t(1), 3, V_C), valu("v_lshl_add_u32", t(0), t(1), 3, t(0)), valu("v_and_b32", t(1), 1, V_G)]
    for p in range(2):
        o += [salu("s_add_u32", S_T0, S_FPAR, p), valu("v_xor_b32", t(2), S_T0, t(1)), valu("v_lshl_add_u32", t(2), t(2), 5, t(0))]
        for st in range(4):
            o += [valu("v_add_u32", F_AA[st][p], FSTG[st], t(2))]
    per_t = 72
    def bhook(G, t, g):
        if t == NH: return put_check(G, g, flag_check("f_c", c_poll, V_FP))
        return g
    c.bhook = bhook
    def extra(G, main, px):
        G.items[px[3]].insert(0, wait_tag("ctx"))
        g = put_seq(G, own_slot(S_ST, S_T0, FG_C), px[2] + 30)
        assert g < px[3]
        G.put(flag_store(S_ST), px[3] + 1)
        put_seq(G, c_poll(), (NH - c.BD) * per_t + 8, 2)
    pre, body = gemm_main(c, extra)
    o += stamp("fin setup") + pre + body + stamp("fin main")
    o += srd(SRD_D, P_WS, WS_PART, SZ_PART)
    for p in range(2):
        for a in range(9):
            x, y = facc(a, 2 * p), facc(a, 2 * p + 1)
            o += [valu("v_cvt_pk_bf16_f32", x[0], x[0], x[1]), valu("v_cvt_pk_bf16_f32", x[1], x[2], x[3]),
                  valu("v_cvt_pk_bf16_f32", x[2], y[0], y[1]), valu("v_cvt_pk_bf16_f32", x[3], y[2], y[3])]
            off = a * 1024
            o += group(salu("s_add_u32", S_ST, S_FOL if p == 0 else S_FOS, off & ~4095), bstore(x, V_L16, SRD_D, S_ST, off & 4095, tag="part", flags=SC1ST))
    return o

def p6():
    o = []
    S_IT, S_MP = SP(1), SP(2)
    o += srd(SRD_A, P_X, 0, 2048 * 1152) + srd(SRD_B, P_OUT, 0, 2048 * 1152)
    VO = [V(8 + 2 * k) for k in range(3)]; VO2 = [V(9 + 2 * k) for k in range(3)]; VP_ = [V(14 + k) for k in range(3)]
    X = [V(176 + 4 * k, 4) for k in range(3)]
    o += [salu("s_sub_u32", S_T0, 15, S_J), salu("s_cmp_lt_u32", None, S_X, 4), salu("s_cselect_b32", S_T0, S_T0, S_J),
          salu("s_lshl_b32", S_T0, S_T0, 2), salu("s_and_b32", S_T1, S_X, 3), salu("s_add_u32", S_MP, S_T0, S_T1),
          salu("s_mul_i32", S_IT, S_MP, 36),
          salu("s_lshl_b32", S_T0, S_MP, 5), valu("v_add_u32", V(17), S_T0, V_C), salu("s_movk_i32", S_T1, 1152),
          valu("v_mul_lo_u32", V(17), V(17), S_T1), valu("v_lshl_add_u32", V(17), V_G, 3, V(17)),
          salu("s_mul_i32", S_T0, S_Q, 9), salu("s_add_u32", S_T0, S_T0, S_W), salu("s_add_u32", S_IT, S_IT, S_T0),
          salu("s_lshl_b32", S_IT, S_IT, 10), salu("s_lshl_b32", S_T0, S_T0, 5), valu("v_add_u32", V(17), S_T0, V(17))]
    for k in range(3):
        o += [valu("v_add_u32", VO[k], 128 * k, V(17)), valu("v_add_u32", VP_[k], 4096 * k, V_L16)]
    o += [salu("s_cmp_eq_u32", None, S_W, 0), salu("s_cselect_b32", S_T0, 0, OOB), valu("v_add_u32", VO[2], S_T0, VO[2]), valu("v_add_u32", VP_[2], S_T0, VP_[2])]
    for k in range(3):
        o += [valu("v_add_u32", VO2[k], 16 * 1152, VO[k])]
    for k in range(3):
        o += [bload(X[k].sub(0, 2), VO[k], SRD_A, 0), bload(X[k].sub(2, 2), VO2[k], SRD_A, 0)]
    o += [salu("s_lshl_b32", S_ST, S_J, 2), salu("s_add_u32", S_ST, S_ST, S_Q), salu("s_lshl_b32", S_ST, S_ST, 7),
          salu("s_lshl_b32", S_T0, S_X, 2), salu("s_add_u32", S_ST, S_ST, S_T0), salu("s_add_u32", S_ST, S_ST, FG_P)]
    o += [wait_tag("part"), barrier(), flag_store(S_ST)]
    o += stamp("part stored")
    o += p_poll() + flag_check("f_p", p_poll, V_FP)
    o += stamp("part flag")
    P = [[V(32 + (k * 8 + s) * 4, 4) for s in range(8)] for k in range(3)]
    for k in range(3):
        for s in range(8):
            o += group(salu("s_add_u32", S_SB, S_IT, s * 64 * 36 * 1024), bload(P[k][s], VP_[k], SRD_D, S_SB))
    for k in range(3):
        accs = [V(136 + 8 * k + i) for i in range(8)]; tmp = V(160)
        for d in range(4):
            o += [valu("v_lshlrev_b32", accs[2 * d], 16, P[k][0][d]), valu("v_and_b32", accs[2 * d + 1], 0xffff0000, P[k][0][d])]
        for s in range(1, 8):
            for d in range(4):
                o += [valu("v_lshlrev_b32", tmp, 16, P[k][s][d]), valu("v_add_f32", accs[2 * d], accs[2 * d], tmp),
                      valu("v_and_b32", tmp, 0xffff0000, P[k][s][d]), valu("v_add_f32", accs[2 * d + 1], accs[2 * d + 1], tmp)]
        for d in range(4):
            o += [valu("v_lshlrev_b32", tmp, 16, X[k][d]), valu("v_add_f32", accs[2 * d], accs[2 * d], tmp),
                  valu("v_and_b32", tmp, 0xffff0000, X[k][d]), valu("v_add_f32", accs[2 * d + 1], accs[2 * d + 1], tmp)]
        for d in range(4): o.append(valu("v_cvt_pk_bf16_f32", X[k][d], accs[2 * d], accs[2 * d + 1]))
        o += [bstore(X[k].sub(0, 2), VO[k], SRD_B, 0), bstore(X[k].sub(2, 2), VO2[k], SRD_B, 0)]
    o += [salu("s_cmp_eq_u32", None, S_ID, 0), salu("s_cselect_b32", S_T0, 0, OOB), valu("v_add_u32", V(17), S_T0, V_FOFF),
          salu("s_mov_b32", S_T1, FG_TAG), bstore(V_INC, V(17), SRD_F, S_T1, flags=SC1)]
    return o

def build():
    SLOW.clear()
    END = [raw("s_endpgm", "other")]
    head, ln_st = p0()
    head += [salu("s_cmp_eq_u32", None, S_ISV, 1), branch("s_cbranch_scc1", "f_v")]
    head, lg, vm = finalize(head)
    var = []
    nst = _stamp_n[0]; names = list(STAMP_NAMES)
    for swap in (False, True):
        _stamp_n[0] = nst; STAMP_NAMES[:] = names
        import copy
        st2 = layernorm()[2]
        b = p1(swap, st2)
        b1, lg1, vm1 = insert_waits(b, lg, vm)
        b1 = insert_nops(b1, head[-12:])
        var.append((b1, lg1, vm1))
    assert len(var[0][2]) == len(var[1][2]) and len(var[0][1]) == len(var[1][1])
    code = head + var[0][0] + [branch("s_branch", "f_q"), label("f_v")] + var[1][0] + [label("f_q"), nop(1)]
    lg, vm = var[0][1], var[0][2]
    mid = p2() + gelu_phase() + stamp("gelu") + p3() + p4_consts() + f_setup()
    mid, lg, vm = insert_waits(mid, lg, vm)
    kvops = [k for k, i in enumerate(vm) if i.tag == "kv"]
    assert len(kvops) >= 8
    need = len(vm) - 1 - kvops[-9] if len(kvops) > 8 else len(vm)
    tailm, lg, vm = insert_waits([waitcnt(vm=min(need, 63)), barrier()] + stamp("att ready"), lg, vm)
    mid = insert_nops(mid + tailm)
    code += mid
    pro = [label("f_tile"),
           salu("s_lshl_b32", S_T0, S_T, 3), salu("s_lshl_b32", S_T1, S_W, 1), salu("s_add_u32", S_T0, S_T0, S_T1),
           salu("s_mul_i32", S_OUT, S_T0, 278528), salu("s_lshl_b32", S_T0, S_H, 12), salu("s_add_u32", S_OUT, S_OUT, S_T0)]
    pro += tile_prologue()
    pro += [salu("s_mov_b32", S_I, S_T), salu("s_cmp_eq_u32", None, S_T, 0), branch("s_cbranch_scc1", "f_last")]
    pro, _, _ = finalize(pro)
    asmgen.MERGE_AGE = 40
    two, lg2, vm2 = insert_waits(att_body(False) + [label("x")] + att_body(False))
    cut = [k for k, i in enumerate(two) if i.kind == "label" and i.text == "x:"][0]
    steady = two[cut + 1:]
    steady = insert_nops(steady, steady[-12:])
    loop = [label("f_loop")] + steady + [branch("s_cbranch_scc1", "f_loop")]
    tail = att_body(True)
    tail += [salu("s_cmp_eq_u32", None, S_PASS, 1), branch("s_cbranch_scc1", "f_epi")]
    t1, lg3, vm3 = insert_waits(tail, lg2, vm2)
    t1 = insert_nops([label("f_last")] + t1, steady[-12:])
    sig = own_slot(S_ST, S_T0, FG_H) + [flag_store(S_ST)]
    sigA, _, _ = insert_waits(sig, lg3, vm3)
    epi = [label("f_epi")] + tile_epilogue()
    epi += [salu("s_cmp_eq_u32", None, S_PASS, 1), branch("s_cbranch_scc1", "f_fin"),
            salu("s_mov_b32", S_PASS, 1), salu("s_mov_b32", S_T, S_J)]
    epi += [valu("v_mov_b32", VQ(qb, ds)[r], VQS(qb, ds)[r]) for qb in range(2) for ds in range(4) for r in range(4)]
    epi += [branch("s_branch", "f_tile"), label("f_fin")]
    e1, lg4, vm4 = insert_waits(epi, lg3, vm3)
    asmgen.MERGE_AGE = 0
    e1 = insert_nops(sigA + e1, t1[-12:])
    code += pro + loop + t1 + e1
    fin = stamp("att done") + p5() + p6() + stamp("end") + stamp_rt("rt1") + stamp_out() + END
    f1, _, _ = insert_waits(fin, lg4, vm4); f1 = insert_nops(f1, e1[-12:])
    code += f1 + SLOW + [label("f_done")] + END
    return code

NAME = "parallel_sum__compressed_kv_cla__geglu_ffn__prompt"
def main(out):
    hdr = open("cdna_kernels/%s.s.ref" % NAME).read().split("; Override launch geometry")[0]
    ins = build()
    kn = NAME + "_kernel"
    s = hdr + "; @launch grid=(256,1,1) block=(256,1,1) lds=163840\n" + PRELUDE + kernel_text(kn, ins)
    s += '.section .rodata,"a"\n' + descriptor(kn, 512, 256, nsgpr=102)
    open(out, "w").write(s)
    print(len(ins), "instructions", len(s), "bytes")
    if DIAG: open(out + ".stamps", "w").write("\n".join(STAMP_NAMES))

if __name__ == "__main__":
    main(sys.argv[1] if len(sys.argv) > 1 else "fused2.s")
```

```python
import sys
HDR = """; @launch grid=(256,1,1) block=(256,1,1) lds=%d
.amdgcn_target "amdgcn-amd-amdhsa--gfx950"
.text
"""
def kernel(name, body_fn, nvgpr=512, accum=256, iters=200, pre=""):
    s = []
    s.append(".globl %s\n.p2align 8\n.type %s,@function\n%s:" % (name, name, name))
    s.append("""
  s_load_dwordx2 s[4:5], s[0:1], 0
  s_load_dwordx2 s[6:7], s[0:1], 8
  s_waitcnt lgkmcnt(0)
  s_cmp_ge_u32 s2, 256
  s_cbranch_scc1 %s_done
  s_mov_b32 s8, s4
  s_mov_b32 s9, s5
  s_mov_b32 s10, 0x1000000
  s_mov_b32 s11, 0x20000
  s_mov_b32 s12, s6
  s_mov_b32 s13, s7
  s_mov_b32 s14, 0x10000
  s_mov_b32 s15, 0x20000
  v_lshrrev_b32 v3, 6, v0
  v_and_b32 v4, 63, v0
  v_lshlrev_b32 v1, 4, v0          ; tid*16 : voffset for DMA
  v_lshlrev_b32 v2, 4, v4          ; lane*16 : lds read addr
  v_readfirstlane_b32 s20, v3      ; wave id
  s_and_b32 s21, s2, 7
  s_lshl_b32 s21, s21, 21          ; 2MB region per xcd
  s_lshl_b32 s22, s20, 10          ; wave*1024 lds base
  s_mov_b32 s23, 0
""" % name)
    for i in range(256):
        s.append("  v_accvgpr_write_b32 a%d, 0" % i)
    for i in range(16, 128):
        s.append("  v_mov_b32 v%d, 0x3c003c00" % i)
    s.append(pre)
    s.append("  s_barrier")
    s.append("  s_memtime s[24:25]")
    s.append("  s_waitcnt lgkmcnt(0)")
    s.append("  s_mov_b32 s30, %d" % iters)
    s.append(".p2align 6")
    s.append("%s_loop:" % name)
    s += body_fn()
    s.append("  s_sub_u32 s30, s30, 1")
    s.append("  s_cmp_lg_u32 s30, 0")
    s.append("  s_cbranch_scc1 %s_loop" % name)
    s.append("  s_waitcnt vmcnt(0) lgkmcnt(0)")
    s.append("  s_memtime s[26:27]")
    s.append("  s_waitcnt lgkmcnt(0)")
    s.append("""
  s_sub_u32 s28, s26, s24
  v_mov_b32 v5, s28
  s_lshl_b32 s29, s2, 4
  s_lshl_b32 s20, s20, 2
  s_add_u32 s29, s29, s20
  v_mov_b32 v6, s29
  v_cmp_eq_u32 vcc, 0, v4
  s_and_saveexec_b64 s[32:33], vcc
  buffer_store_dword v5, v6, s[12:15], 0 offen
  s_waitcnt vmcnt(0)
%s_done:
  s_endpgm
""" % name)
    return "\n".join(s)

def kd(name, nvgpr=512, accum=256):
    return """
.amdhsa_kernel %s
  .amdhsa_next_free_vgpr %d
  .amdhsa_next_free_sgpr 96
  .amdhsa_accum_offset %d
  .amdhsa_group_segment_fixed_size 0
  .amdhsa_kernarg_size 16
  .amdhsa_user_sgpr_count 2
  .amdhsa_user_sgpr_kernarg_segment_ptr 1
  .amdhsa_system_sgpr_workgroup_id_x 1
.end_amdhsa_kernel
""" % (name, nvgpr, accum)

def mfma(i, a=None, b=None):
    acc = (i % 16) * 16
    a = 16 + (i % 4) * 4 if a is None else a
    b = 32 + ((i // 4) % 4) * 4 if b is None else b
    return "  v_mfma_f32_32x32x16_bf16 a[%d:%d], v[%d:%d], v[%d:%d], a[%d:%d]" % (acc, acc + 15, a, a + 3, b, b + 3, acc, acc + 15)

def body(nds128=0, ndstr=0, ndma=0, barrier=False, nvalu=0, nexp=0, m0each=True, dmapos=None):
    def f():
        out = []
        extra = [[] for _ in range(64)]
        ds = []
        for j in range(nds128):
            r = 64 + (j % 8) * 4
            ds.append("  ds_read_b128 v[%d:%d], v2 offset:%d" % (r, r + 3, (j * 1024) % 65536))
        for j in range(ndstr):
            r = 96 + (j % 8) * 2
            ds.append("  ds_read_b64_tr_b16 v[%d:%d], v2 offset:%d" % (r, r + 1, (j * 1024) % 65536))
        for j, d in enumerate(ds):
            extra[(j * 64) // max(len(ds), 1)].append(d)
        for j in range(ndma):
            pos = (j * 48) // ndma + 2 if dmapos is None else dmapos(j)
            if m0each or j % 4 == 0:
                extra[pos].append("  s_add_u32 m0, s22, %d" % (65536 + (j // 4 * 4 if not m0each else j) * 4096))
                extra[pos].append("  s_add_u32 s31, s21, s23")
            off = 0 if m0each else (j % 4) * 1024
            extra[pos].append("  buffer_load_dwordx4 v1, s[8:11], s31 offen offset:%d lds" % off)
            if m0each or j % 4 == 3:
                extra[pos].append("  s_add_u32 s23, s23, %d" % (4096 if m0each else 16384))
                extra[pos].append("  s_and_b32 s23, s23, 0x1fffff")
        for j in range(nvalu):
            extra[(j * 64) // nvalu].append("  v_add_f32 v%d, v%d, v%d" % (120 + j % 4, 120 + j % 4, 119))
        for j in range(nexp):
            extra[(j * 64) // nexp].append("  v_exp_f32 v%d, v%d" % (112 + j % 4, 119))
        for i in range(64):
            out.append(mfma(i))
            out += extra[i]
            if i == 48 and barrier:
                out.append("  s_waitcnt vmcnt(0) lgkmcnt(0)")
                out.append("  s_barrier")
        return out
    return f

variants = {
 "mf_kernel": body(),
 "ds_kernel": body(nds128=16, ndstr=32),
 "dsdma_kernel": body(nds128=16, ndstr=32, ndma=16),
 "dsdma4_kernel": body(nds128=16, ndstr=32, ndma=16, m0each=False),
 "dsdmabar_kernel": body(nds128=16, ndstr=32, ndma=16, barrier=True, m0each=False),
 "dma_kernel": body(ndma=16, m0each=False),
 "valu3_kernel": body(nvalu=192),
 "valu5_kernel": body(nvalu=320),
 "valu6_kernel": body(nvalu=384),
 "valu7_kernel": body(nvalu=448),
 "exp2_kernel": body(nexp=128),
 "exp3_kernel": body(nexp=192),
 "exp4_kernel": body(nexp=256),
 "mix_kernel": body(nexp=64, nvalu=128, nds128=32, ndma=16, m0each=False),
 "mixb_kernel": body(nexp=64, nvalu=128, nds128=32, ndma=16, m0each=False, barrier=True),
}
s = HDR % 163840
for n, b in variants.items():
    s += kernel(n, b) + "\n"
s += '.section .rodata,"a"\n'
for n in variants:
    s += ".p2align 6\n" + kd(n)
lines = "".join("; @launch kernel=%s grid=(256,1,1) block=(256,1,1) lds=163840\n" % n for n in variants)
s = lines + s.split("\n", 1)[1]
open("mb1.s", "w").write(s)
open("mb1.names", "w").write("\n".join(variants))
```

```python
import gen_mb1 as g
def m16(i):
    acc = (i % 16) * 4
    return "  v_mfma_f32_16x16x32_bf16 a[%d:%d], v[%d:%d], v[%d:%d], a[%d:%d]" % (acc, acc + 3, 8 + (i % 4) * 4, 11 + (i % 4) * 4, 24 + (i // 4 % 4) * 4, 27 + (i // 4 % 4) * 4, acc, acc + 3)
def kern(name, pref):
    s = [".globl %s\n.p2align 8\n.type %s,@function\n%s:" % (name, name, name)]
    s.append("""
  s_load_dwordx2 s[6:7], s[0:1], 8
  s_waitcnt lgkmcnt(0)
  s_cmp_ge_u32 s2, 256
  s_cbranch_scc1 NAME_done
  s_mov_b32 s12, s6
  s_mov_b32 s13, s7
  s_mov_b32 s14, 0x100000
  s_mov_b32 s15, 0x20000
  v_lshrrev_b32 v3, 6, v0
  v_and_b32 v4, 63, v0
  s_nop 0
  v_readfirstlane_b32 s20, v3
""".replace("NAME", name))
    if pref:
        s.append("""
  s_getpc_b64 s[40:41]
NAME_pc:
  s_lshr_b32 s42, s2, 3
  s_lshl_b32 s42, s42, 11          ; 2 KB per workgroup of the XCD (16 lines), 32 workgroups -> 64 KB
  v_and_b32 v5, 15, v0
  v_lshlrev_b32 v5, 7, v5
  v_add_u32 v5, s42, v5
  v_mov_b32 v7, s41
  v_add_co_u32 v6, vcc, s40, v5
  s_nop 1
  v_addc_co_u32 v7, vcc, 0, v7, vcc
  global_load_dword v8, v[6:7], off
""".replace("NAME", name))
        if pref == 2: s.append("  s_waitcnt vmcnt(0)\n  s_sleep 40")
    for i in range(8, 64): s.append("  v_mov_b32 v%d, 0x3f8ccccd" % i) if not (pref and i == 8) else None
    for i in range(64): s.append("  v_accvgpr_write_b32 a%d, 0" % i)
    s.append("  s_barrier")
    for part in range(8):
        s.append("  s_memtime s[%d:%d]\n  s_waitcnt lgkmcnt(0)" % (44 + 2 * part, 45 + 2 * part))
        s += [m16(i) for i in range(1024)]
    s.append("  s_memtime s[60:61]\n  s_waitcnt vmcnt(0) lgkmcnt(0)")
    for part in range(8):
        s.append("  s_sub_u32 s62, s%d, s%d" % (46 + 2 * part, 44 + 2 * part))
        s.append("  v_mov_b32 v5, s62\n  s_lshl_b32 s29, s2, 5\n  s_add_u32 s29, s29, %d\n  v_mov_b32 v6, s29" % (4 * part))
        s.append("  buffer_store_dword v5, v6, s[12:15], 0 offen\n  s_waitcnt vmcnt(0)")
    s.append("NAME_done:\n  s_endpgm\n".replace("NAME", name))
    return "\n".join(s)
variants = {"c0_kernel": 0, "c1_kernel": 1, "c2_kernel": 2}
s = '.amdgcn_target "amdgcn-amd-amdhsa--gfx950"\n.text\n'
for n, a in variants.items(): s += kern(n, a) + "\n"
s += '.section .rodata,"a"\n'
for n in variants: s += ".p2align 6\n" + g.kd(n, 128, 64)
lines = "".join("; @launch kernel=%s grid=(256,1,1) block=(256,1,1) lds=0\n" % n for n in variants)
open("mb12.s", "w").write(lines + s)
```

```python
import gen_mb1 as g
def kern(name, flags):
    s = []
    s.append(".globl %s\n.p2align 8\n.type %s,@function\n%s:" % (name, name, name))
    s.append("""
  s_load_dwordx2 s[4:5], s[0:1], 0
  s_load_dwordx2 s[6:7], s[0:1], 8
  s_waitcnt lgkmcnt(0)
  s_cmp_ge_u32 s2, 256
  s_cbranch_scc1 NAME_done
  s_mov_b32 s8, s4
  s_mov_b32 s9, s5
  s_mov_b32 s10, 0x4000000
  s_mov_b32 s11, 0x20000
  s_mov_b32 s12, s6
  s_mov_b32 s13, s7
  s_mov_b32 s14, 0x100000
  s_mov_b32 s15, 0x20000
  v_lshlrev_b32 v1, 4, v0
  s_lshl_b32 s21, s2, 16
  s_mov_b32 s22, s21
  s_memrealtime s[40:41]
  s_waitcnt lgkmcnt(0)
""".replace("NAME", name))
    for k in range(16):
        s.append("  buffer_load_dwordx4 v[%d:%d], v1, s[8:11], s21 offen%s" % (12 + 4 * (k % 8), 15 + 4 * (k % 8), flags))
        s.append("  s_add_u32 s21, s21, 4096")
    s.append("  s_waitcnt vmcnt(0)\n  s_barrier\n  s_memrealtime s[42:43]\n  s_waitcnt lgkmcnt(0)")
    for k in range(16):
        s.append("  buffer_load_dwordx4 v[%d:%d], v1, s[8:11], s22 offen sc1" % (12 + 4 * (k % 8), 15 + 4 * (k % 8)))
        s.append("  s_add_u32 s22, s22, 4096")
    s.append("""
  s_waitcnt vmcnt(0)
  s_memrealtime s[44:45]
  s_waitcnt lgkmcnt(0)
  s_sub_u32 s46, s42, s40
  s_sub_u32 s47, s44, s42
  v_mov_b32 v5, s46
  v_mov_b32 v6, s47
  s_lshl_b32 s29, s2, 3
  v_mov_b32 v7, s29
  v_cmp_eq_u32 vcc, 0, v0
  s_and_saveexec_b64 s[32:33], vcc
  v_mov_b32 v2, v5
  v_mov_b32 v3, v6
  buffer_store_dwordx2 v[2:3], v7, s[12:15], 0 offen
  s_waitcnt vmcnt(0)
NAME_done:
  s_endpgm
""".replace("NAME", name))
    return "\n".join(s)
variants = {}
for fn, fl in (("plain", ""), ("nt", " nt"), ("sc0", " sc0"), ("sc1", " sc1"), ("sc0nt", " sc0 nt"), ("sc1nt", " sc1 nt"), ("sc01", " sc0 sc1"), ("sc01nt", " sc0 sc1 nt")):
    variants["l_%s_kernel" % fn] = fl
s = '.amdgcn_target "amdgcn-amd-amdhsa--gfx950"\n.text\n'
for n, a in variants.items(): s += kern(n, a) + "\n"
s += '.section .rodata,"a"\n'
for n in variants: s += ".p2align 6\n" + g.kd(n, 64, 64)
lines = "".join("; @launch kernel=%s grid=(256,1,1) block=(256,1,1) lds=0\n" % n for n in variants)
open("mb13.s", "w").write(lines + s)
open("mb13.names", "w").write("\n".join(variants))
```

```python
import gen_mb1 as g
def kernel3(name, shape, fill):
    s = []
    s.append(".globl %s\n.p2align 8\n.type %s,@function\n%s:" % (name, name, name))
    s.append("""
  s_load_dwordx2 s[4:5], s[0:1], 0
  s_load_dwordx2 s[6:7], s[0:1], 8
  s_load_dwordx2 s[16:17], s[0:1], 16
  s_waitcnt lgkmcnt(0)
  s_load_dword s30, s[16:17], 0
  s_cmp_ge_u32 s2, 256
  s_cbranch_scc1 %s_done
  s_mov_b32 s8, s4
  s_mov_b32 s9, s5
  s_mov_b32 s10, 0x1000000
  s_mov_b32 s11, 0x20000
  s_mov_b32 s12, s6
  s_mov_b32 s13, s7
  s_mov_b32 s14, 0x10000
  s_mov_b32 s15, 0x20000
  v_lshrrev_b32 v3, 6, v0
  v_and_b32 v4, 63, v0
  v_lshlrev_b32 v1, 4, v0
  v_lshlrev_b32 v2, 4, v4
  v_readfirstlane_b32 s20, v3
  s_and_b32 s21, s2, 7
  s_lshl_b32 s21, s21, 21
  s_lshl_b32 s22, s20, 10
  s_mov_b32 s23, 0
""" % name)
    for i in range(256):
        s.append("  v_accvgpr_write_b32 a%d, 0" % i)
    for j in range(28):
        s.append("  buffer_load_dwordx4 v[%d:%d], v1, s[8:11], 0 offen offset:%d" % (16 + 4 * j, 19 + 4 * j, j * 16))
    s.append("  s_waitcnt vmcnt(0)")
    for j in range(16):
        s.append("  v_lshlrev_b32 v5, 4, v0")
        s.append("  ds_write_b128 v5, v[%d:%d] offset:%d" % (16 + 4 * j, 19 + 4 * j, j * 4096))
    s.append("  s_waitcnt lgkmcnt(0)")
    s.append("  s_barrier")
    s.append("  s_memtime s[24:25]")
    s.append("  s_memrealtime s[34:35]")
    s.append("  s_waitcnt lgkmcnt(0)")
    s.append(".p2align 6")
    s.append("%s_loop:" % name)
    n = 64 if shape == 32 else 128
    for i in range(n):
        if shape == 32:
            acc = (i % 16) * 16
            a = 16 + (i % 4) * 4 + 32 * ((i // 16) % 2); b = 32 + ((i // 4) % 4) * 4 + 32 * ((i // 16) % 2)
            s.append("  v_mfma_f32_32x32x16_bf16 a[%d:%d], v[%d:%d], v[%d:%d], a[%d:%d]" % (acc, acc + 15, a, a + 3, b, b + 3, acc, acc + 15))
        else:
            acc = (i % 64) * 4
            h = (i // 64) % 2
            a = 16 + (i % 8) * 4 ; b = 48 + ((i // 8) % 8) * 4
            s.append("  v_mfma_f32_16x16x32_bf16 a[%d:%d], v[%d:%d], v[%d:%d], a[%d:%d]" % (acc, acc + 3, a, a + 3, b, b + 3, acc, acc + 3))
        s += fill(i if shape == 32 else i, shape)
    s.append("  s_sub_u32 s30, s30, 1")
    s.append("  s_cmp_lg_u32 s30, 0")
    s.append("  s_cbranch_scc1 %s_loop" % name)
    s.append("  s_waitcnt vmcnt(0) lgkmcnt(0)")
    s.append("  s_memtime s[26:27]")
    s.append("  s_memrealtime s[36:37]")
    s.append("  s_waitcnt lgkmcnt(0)")
    s.append("""
  s_sub_u32 s28, s26, s24
  s_sub_u32 s38, s36, s34
  v_mov_b32 v5, s28
  v_mov_b32 v6, s38
  s_lshl_b32 s29, s2, 5
  s_lshl_b32 s20, s20, 3
  s_add_u32 s29, s29, s20
  v_mov_b32 v8, s29
  v_cmp_eq_u32 vcc, 0, v4
  s_and_saveexec_b64 s[32:33], vcc
  v_mov_b32 v10, v5
  v_mov_b32 v11, v6
  buffer_store_dwordx2 v[10:11], v8, s[12:15], 0 offen
  s_waitcnt vmcnt(0)
%s_done:
  s_endpgm
""" % name)
    return "\n".join(s)

def nops(k):
    def f(i, shape):
        if shape == 32: return ["  s_nop 0"] * k
        return ["  s_nop 0"] * (k // 2 + (k % 2 if i % 2 else 0))
    return f
def per32(fn):
    def f(i, shape):
        if shape == 32: return fn(i)
        l = fn(i // 2)
        h = (len(l) + 1) // 2
        return l[:h] if i % 2 == 0 else l[h:]
    return f
def gemm_fill(j):
    out = []
    if j % 4 == 0:
        r = 80 + (j // 4 % 8) * 4
        out.append("  ds_read_b128 v[%d:%d], v2 offset:%d" % (r, r + 3, (j * 1024) % 65536))
    if j % 2 == 1:
        r = 112 + (j // 2 % 8) * 2
        out.append("  ds_read_b64_tr_b16 v[%d:%d], v2 offset:%d" % (r, r + 1, (j * 512) % 65536))
    if j % 4 == 2:
        jj = j // 4
        if jj % 4 == 0:
            out.append("  s_add_u32 m0, s22, %d" % (65536 + jj * 4096))
            out.append("  s_add_u32 s31, s21, s23")
        out.append("  buffer_load_dwordx4 v1, s[8:11], s31 offen offset:%d lds" % ((jj % 4) * 1024))
        if jj % 4 == 3:
            out.append("  s_add_u32 s23, s23, 16384")
            out.append("  s_and_b32 s23, s23, 0x1fffff")
    return out
def lds_fill(j):
    out = []
    if j % 4 == 0:
        r = 80 + (j // 4 % 8) * 4
        out.append("  ds_read_b128 v[%d:%d], v2 offset:%d" % (r, r + 3, (j * 1024) % 65536))
    if j % 2 == 1:
        r = 112 + (j // 2 % 8) * 2
        out.append("  ds_read_b64_tr_b16 v[%d:%d], v2 offset:%d" % (r, r + 1, (j * 512) % 65536))
    return out
def attn_fill(j):
    out = []
    out.append("  v_exp_f32 v%d, v%d" % (8 + j % 2, 16 + (j * 3) % 64))
    out.append("  v_add_f32 v%d, v%d, v%d" % (10 + j % 2, 10 + j % 2, 8 + (j + 1) % 2))
    if j % 2 == 0:
        out.append("  v_cvt_pk_bf16_f32 v%d, v8, v9" % (12 + (j // 2) % 2))
        r = 80 + (j // 2 % 8) * 4
        out.append("  ds_read_b128 v[%d:%d], v2 offset:%d" % (r, r + 3, (j * 1024) % 65536))
    if j % 4 == 1:
        jj = j // 4
        if jj % 4 == 0:
            out.append("  s_add_u32 m0, s22, %d" % (65536 + jj * 4096))
            out.append("  s_add_u32 s31, s21, s23")
        out.append("  buffer_load_dwordx4 v1, s[8:11], s31 offen offset:%d lds" % ((jj % 4) * 1024))
        if jj % 4 == 3:
            out.append("  s_add_u32 s23, s23, 16384")
            out.append("  s_and_b32 s23, s23, 0x1fffff")
    return out
variants = {}
for sh in (32, 16):
    for k in (0, 6, 8, 10, 12, 16):
        variants["n%d_%d_kernel" % (sh, k)] = (sh, nops(k))
    variants["gemm%d_kernel" % sh] = (sh, per32(gemm_fill))
    variants["lds%d_kernel" % sh] = (sh, per32(lds_fill))
    variants["attn%d_kernel" % sh] = (sh, per32(attn_fill))
s = '.amdgcn_target "amdgcn-amd-amdhsa--gfx950"\n.text\n'
for n, (sh, l) in variants.items():
    s += kernel3(n, sh, l) + "\n"
s += '.section .rodata,"a"\n'
for n in variants:
    s += ".p2align 6\n" + g.kd(n)
lines = "".join("; @launch kernel=%s grid=(256,1,1) block=(256,1,1) lds=163840\n" % n for n in variants)
open("mb3.s", "w").write(lines + s)
open("mb3.names", "w").write("\n".join(variants))
```

```python
import gen_mb1 as g
import gen_mb3 as g3
PRE = """
  s_lshl_b32 s50, s2, 18
  s_lshl_b32 s51, s20, 16
  s_add_u32 s50, s50, s51
  s_and_b32 s50, s50, 0xffffff
  v_lshlrev_b32 v9, 4, v4
  v_mov_b32 v12, 0x7ff00000
  s_cmp_eq_u32 s20, 0
  s_cselect_b32 s52, 0, 0x7ff00000
  v_add_u32 v12, s52, v9
  s_cmp_eq_u32 s20, 1
  s_cselect_b32 s52, 0, 0x7ff00000
  v_add_u32 v13, s52, v9
  s_cmp_eq_u32 s20, 2
  s_cselect_b32 s52, 0, 0x7ff00000
  v_add_u32 v14, s52, v9
  s_cmp_eq_u32 s20, 3
  s_cselect_b32 s52, 0, 0x7ff00000
  v_add_u32 v15, s52, v9
"""
def none(i, sh): return []
def lock(flag, period=32):
    def f(i, sh):
        if i % period == 8: return ["  s_add_u32 s50, s50, 1024", "  s_and_b32 s50, s50, 0xffffff", "  buffer_store_dwordx4 v[112:115], v9, s[8:11], s50 offen" + flag]
        return []
    return f
def stag(flag, period=32, d=8):
    def f(i, sh):
        k = i % period
        out = []
        if k == 0: out += ["  s_add_u32 s50, s50, 1024", "  s_and_b32 s50, s50, 0xffffff"]
        if k % d == 1 and k // d < 4: out += ["  buffer_store_dwordx4 v[112:115], v%d, s[8:11], s50 offen%s" % (12 + k // d, flag)]
        return out
    return f
def brs(flag, period=32, d=8):
    cnt = [0]
    def f(i, sh):
        k = i % period
        out = []
        if k == 0: out += ["  s_add_u32 s50, s50, 1024", "  s_and_b32 s50, s50, 0xffffff"]
        if k % d == 1 and k // d < 4:
            cnt[0] += 1
            l = "skip_%s_%d" % ("c" if flag else "p", cnt[0])
            out += ["  s_cmp_eq_u32 s20, %d" % (k // d), "  s_cbranch_scc0 %s" % l, "  buffer_store_dwordx4 v[112:115], v9, s[8:11], s50 offen" + flag, l + ":"]
        return out
    return f
def allo(period=8):
    def f(i, sh):
        if i % period == 1: return ["  buffer_store_dwordx4 v[112:115], v16, s[8:11], s50 offen"]
        return []
    return f
variants = {"s0_kernel": none, "sl_kernel": lock(""), "slc_kernel": lock(" sc1"), "ss_kernel": stag(""), "ssc_kernel": stag(" sc1"),
            "sb_kernel": brs(""), "sbc_kernel": brs(" sc1"), "ssc4_kernel": stag(" sc1", 32, 4), "sl16_kernel": lock(" sc1", 16), "ss16_kernel": stag(" sc1", 16, 4)}
def k(n, l):
    t = g3.kernel3(n, 16, l)
    return t.replace("  s_waitcnt lgkmcnt(0)\n  s_barrier\n  s_memtime", PRE + "  s_waitcnt lgkmcnt(0)\n  s_barrier\n  s_memtime", 1)
s = '.amdgcn_target "amdgcn-amd-amdhsa--gfx950"\n.text\n'
for n, l in variants.items(): s += k(n, l) + "\n"
s += '.section .rodata,"a"\n'
for n in variants: s += ".p2align 6\n" + g.kd(n)
lines = "".join("; @launch kernel=%s grid=(256,1,1) block=(256,1,1) lds=163840\n" % n for n in variants)
open("mb14.s", "w").write(lines + s)
open("mb14.names", "w").write("\n".join(variants))
```
